```python
import torch

def _softmax(x, axis=-1):
    return torch.softmax(x, dim=axis)

def _gelu(x):
    return torch.nn.functional.gelu(x, approximate='tanh')

def _silu(x):
    return torch.nn.functional.silu(x)

def _sigmoid(x):
    return torch.sigmoid(x)

def _layernorm(x, axis=-1, eps=1e-05):
    m = x.mean(dim=axis, keepdim=True)
    v = x.var(dim=axis, keepdim=True, unbiased=False)
    return (x - m) / torch.sqrt(v + eps)

def _scatter_add(tgt, idx, src, axis=0):
    return tgt.clone().index_add_(axis, idx, src)

def _segment_sum(src, seg, n):
    out = torch.zeros((n,) + src.shape[1:], dtype=src.dtype)
    return out.index_add_(0, seg, src)

def _pad(x, pw):
    flat = tuple((v for pair in reversed(pw) for v in pair))
    return torch.nn.functional.pad(x, flat)
kernel_name = 'standalone__tree_speculative_verify_tree_attention_over_candidate_token_tree__decode'

def setup_inputs():

    _w = lambda a: (lambda t: t.to(torch.bfloat16) if t.is_floating_point() else t)(torch.as_tensor(a))
    B, Hq, Hkv, T, C, D = (2, 32, 4, 1, 32768, 128)
    tree_mask = torch.zeros((B, T, T), dtype=float)
    for b in range(B):
        parent = torch.zeros(T, dtype=torch.int64)
        for i in range(1, T):
            parent[i] = int(torch.randint(0, i, (1,)).item())
        for i in range(T):
            j = i
            tree_mask[b, i, j] = 1.0
            while j > 0:
                j = parent[j]
                tree_mask[b, i, j] = 1.0
    return {'q': _w((lambda *s: torch.randn(*s, dtype=torch.bfloat16) * 0.8)(B, Hq, T, D)), 'k_cache': _w((lambda *s: torch.randn(*s, dtype=torch.bfloat16) * 0.8)(B, Hkv, C, D)), 'v_cache': _w((lambda *s: torch.randn(*s, dtype=torch.bfloat16) * 0.05)(B, Hkv, C, D)), 'k_tree': _w((lambda *s: torch.randn(*s, dtype=torch.bfloat16) * 0.8)(B, Hkv, T, D)), 'v_tree': _w((lambda *s: torch.randn(*s, dtype=torch.bfloat16) * 0.05)(B, Hkv, T, D)), 'tree_mask': _w(tree_mask)}

def reference(q, k_cache, v_cache, k_tree, v_tree, tree_mask):
    B, Hq, T, D = q.shape
    Hkv, C = (k_cache.shape[1], k_cache.shape[2])
    rep = Hq // Hkv
    kc = (lambda x, n, axis: torch.repeat_interleave(x, n, dim=axis))(k_cache, rep, axis=1)
    vc = (lambda x, n, axis: torch.repeat_interleave(x, n, dim=axis))(v_cache, rep, axis=1)
    kt = (lambda x, n, axis: torch.repeat_interleave(x, n, dim=axis))(k_tree, rep, axis=1)
    vt = (lambda x, n, axis: torch.repeat_interleave(x, n, dim=axis))(v_tree, rep, axis=1)
    k = torch.concatenate([kc, kt], axis=2)
    v = torch.concatenate([vc, vt], axis=2)
    scale = D ** (-0.5)
    scores = torch.einsum('bhqd,bhkd->bhqk', q, k) * scale
    ctx_mask = torch.ones((B, 1, T, C), dtype=scores.dtype)
    tm = tree_mask[:, None, :, :].clone()
    full_mask = torch.concatenate([ctx_mask, tm], axis=-1)
    scores = scores + (1.0 - full_mask) * -1000000000.0
    p = _softmax(scores, axis=-1)
    return torch.einsum('bhqk,bhkd->bhqd', p, v)
```

```python
import sys, argparse, math

NAME = "standalone__tree_speculative_verify_tree_attention_over_candidate_token_tree__decode"

HEADER = """; Kernarg layout (72 bytes, ptrs only, base s[0:1]):
"""


class Asm:
    def __init__(self):
        self.lines = []
        self.vq = []
        self.nv = 0

    def __call__(self, s):
        self.lines.append("    " + s)

    def label(self, s):
        self.lines.append(s + ":")

    def comment(self, s):
        self.lines.append("    ; " + s)

    def vreg(self, n=1, align=1):
        self.nv = (self.nv + align - 1) // align * align
        r = self.nv
        self.nv += n
        return r

    def vmem(self, s, tag):
        self(s)
        self.vq.append(tag)

    def wait_vm(self, tag, extra=""):
        idx = max(i for i, t in enumerate(self.vq) if t == tag)
        n = len(self.vq) - 1 - idx
        assert n <= 63, n
        self(f"s_waitcnt vmcnt({n}){extra}")
        self.vq = self.vq[idx + 1:]

    def text(self):
        return "\n".join(self.lines) + "\n"


def vr(b, n):
    return f"v[{b}:{b + n - 1}]" if n > 1 else f"v{b}"


def f32bits(x):
    import struct
    return struct.unpack("<I", struct.pack("<f", x))[0]


WS_O = 0
WS_ML = 1 << 20
WS_STAMP = 16 << 20


def emit_consumer(a, P, poll, sGrp, sJ, vLane, tmp):
    O = tmp
    ML = tmp + 16
    vA = tmp + 24
    vB = tmp + 25
    X = tmp + 26
    pol = " sc1" if poll else ""
    a(f"v_lshlrev_b32 v{vA}, 4, v{vLane}")
    a(f"v_lshrrev_b32 v{vB}, 3, v{vLane}")
    a(f"v_lshlrev_b32 v{vB}, 7, v{vB}")
    a(f"s_lshl_b32 s56, s{sGrp}, 17")
    a(f"s_lshl_b32 s57, s{sJ}, 12")
    a(f"s_add_u32 s56, s56, s57")
    a(f"s_lshl_b32 s57, s{sGrp}, 12")
    a(f"s_lshr_b32 s58, s{sJ}, 2")
    a(f"s_lshl_b32 s58, s58, 3")
    a(f"s_add_u32 s57, s57, s58")
    a(f"s_add_u32 s57, s57, {WS_ML}")
    if poll:
        a("s_mov_b32 s59, 0")
        a.label("L_poll")
    for i in range(4):
        a(f"buffer_load_dwordx4 {vr(O + 4 * i, 4)}, v{vA}, s[36:39], s56 offen offset:{1024 * i}{pol}")
    for i in range(4):
        a(f"buffer_load_dwordx2 {vr(ML + 2 * i, 2)}, v{vB}, s[36:39], s57 offen offset:{1024 * i}{pol}")
    a("s_waitcnt vmcnt(0)")
    if poll:
        a(f"v_max3_u32 v{X}, v{O}, v{O + 1}, v{O + 2}")
        a(f"v_max3_u32 v{X + 1}, v{O + 3}, v{O + 4}, v{O + 5}")
        regs = list(range(O + 6, O + 24))
        k = 0
        while regs:
            a(f"v_max3_u32 v{X + k}, v{X + k}, v{regs[0]}, v{regs[1]}")
            regs = regs[2:]
            k ^= 1
        a(f"v_max_u32 v{X}, v{X}, v{X + 1}")
        a(f"v_cmp_eq_u32 vcc, -1, v{X}")
        a("s_add_u32 s59, s59, 1")
        a(f"s_cmp_lt_u32 s59, {P.spin}")
        a("s_cselect_b64 vcc, vcc, 0")
        a("s_nop 0")
        a("s_cbranch_vccnz L_poll")
    M = X
    T = X + 1
    a(f"v_max3_f32 v{M}, v{ML}, v{ML + 2}, v{ML + 4}")
    a(f"v_max_f32 v{M}, v{M}, v{ML + 6}")
    a("s_nop 1")
    a(f"v_max_f32_dpp v{M}, v{M}, v{M} row_ror:8 row_mask:0xf bank_mask:0xf")
    a(f"v_mov_b32 v{T}, v{M}")
    a("s_nop 1")
    a(f"v_permlane16_swap_b32 v{M}, v{T}")
    a("s_nop 1")
    a(f"v_max_f32 v{M}, v{M}, v{T}")
    a(f"v_mov_b32 v{T}, v{M}")
    a("s_nop 1")
    a(f"v_permlane32_swap_b32 v{M}, v{T}")
    a("s_nop 1")
    a(f"v_max_f32 v{M}, v{M}, v{T}")
    Wt = X + 2
    for i in range(4):
        a(f"v_sub_f32 v{Wt + i}, v{ML + 2 * i}, v{M}")
    for i in range(4):
        a(f"v_exp_f32 v{Wt + i}, v{Wt + i}")
    R = X + 6
    a("s_nop 0")
    for c in range(4):
        a(f"v_mul_f32 v{R + c}, v{Wt}, v{O + c}")
    a(f"v_mul_f32 v{R + 4}, v{Wt}, v{ML + 1}")
    for i in range(1, 4):
        for c in range(4):
            a(f"v_fmac_f32 v{R + c}, v{Wt + i}, v{O + 4 * i + c}")
        a(f"v_fmac_f32 v{R + 4}, v{Wt + i}, v{ML + 2 * i + 1}")
    a("s_nop 1")
    for c in range(5):
        a(f"v_add_f32_dpp v{R + c}, v{R + c}, v{R + c} row_ror:8 row_mask:0xf bank_mask:0xf")
    C = O
    for c in range(5):
        a(f"v_mov_b32 v{C + c}, v{R + c}")
    a("s_nop 1")
    for c in range(5):
        a(f"v_permlane16_swap_b32 v{R + c}, v{C + c}")
    a("s_nop 1")
    for c in range(5):
        a(f"v_add_f32 v{R + c}, v{R + c}, v{C + c}")
    for c in range(5):
        a(f"v_mov_b32 v{C + c}, v{R + c}")
    a("s_nop 1")
    for c in range(5):
        a(f"v_permlane32_swap_b32 v{R + c}, v{C + c}")
    a("s_nop 1")
    for c in range(5):
        a(f"v_add_f32 v{R + c}, v{R + c}, v{C + c}")
    a(f"v_rcp_f32 v{R + 4}, v{R + 4}")
    a(f"s_lshl_b32 s56, s{sGrp}, 11")
    a(f"s_lshl_b32 s57, s{sJ}, 6")
    a(f"s_add_u32 s56, s56, s57")
    a(f"v_lshlrev_b32 v{vA}, 3, v{vLane}")
    for c in range(4):
        a(f"v_mul_f32 v{R + c}, v{R + c}, v{R + 4}")
    a(f"v_cvt_pk_bf16_f32 v{C}, v{R}, v{R + 1}")
    a(f"v_cvt_pk_bf16_f32 v{C + 1}, v{R + 2}, v{R + 3}")
    a("s_mov_b64 exec, 0xff")
    a(f"buffer_store_dwordx2 {vr(C, 2)}, v{vA}, s[40:43], s56 offen{P.outpol}")


def srd(a, d, b, size):
    a(f"s_mov_b32 s{d}, s{b}")
    a(f"s_and_b32 s{d + 1}, s{b + 1}, 0xffff")
    a(f"s_mov_b32 s{d + 2}, {size}")
    a(f"s_mov_b32 s{d + 3}, 0x00020000")


def kd(name, nv, ns=96):
    nv = (nv + 7) // 8 * 8
    return f""".p2align 6
.amdhsa_kernel {name}
  .amdhsa_next_free_vgpr {nv}
  .amdhsa_next_free_sgpr {ns}
  .amdhsa_accum_offset {min(nv, 256)}
  .amdhsa_group_segment_fixed_size 0
  .amdhsa_kernarg_size 72
  .amdhsa_user_sgpr_count 2
  .amdhsa_user_sgpr_kernarg_segment_ptr 1
  .amdhsa_system_sgpr_workgroup_id_x 1
  .amdhsa_float_denorm_mode_32 3
.end_amdhsa_kernel
"""


def gen(P):
    W, NS = P.W, P.NS
    KW = 1024 // W
    NT = KW // 16
    RING = NS * 4096
    SCR = W * RING
    LDS = SCR + 1024
    one = P.mode == "one"
    pol = (" " + P.pol) if P.pol else ""
    CSC = (128 ** -0.5) * math.log2(math.e)

    a = Asm()
    kname = NAME + "_kernel" if one else "part_kernel"
    a.lines.append(f".globl {kname}\n.p2align 8\n.type {kname},@function")
    a.label(kname)
    vTid = a.vreg()
    vLane = a.vreg()
    vG = a.vreg()
    vN = a.vreg()
    vT = a.vreg(8, 4)
    vKs = a.vreg(4)
    vVs = a.vreg(2)
    vKr = a.vreg(4)
    vVr = a.vreg(8)
    vPub = a.vreg()
    vM = a.vreg()
    vL = a.vreg()
    vCnt = a.vreg()
    vQ = a.vreg(16, 4)
    vKt = a.vreg(16, 4)
    vVt = a.vreg(16, 4)
    vF = a.vreg(32, 4)
    vAcc = a.vreg(32, 4)
    vS = a.vreg(NT * 4, 4)
    vP = a.vreg(NT * 2, 4)
    vSt = a.vreg(4, 4)
    sW, sLds, sGrp, sSp, sBase, sOff = 22, 23, 60, 61, 62, 63
    sTree, sMask, sC = 64, 65, 66
    stamps = []

    def stamp():
        if P.stamp:
            r = 70 + 2 * len(stamps)
            stamps.append(r)
            a(f"s_memrealtime s[{r}:{r + 1}]")

    a("s_cmp_ge_u32 s2, 256")
    a("s_cbranch_scc1 L_end")
    a("s_load_dwordx16 s[4:19], s[0:1], 0")
    a("s_load_dwordx2 s[20:21], s[0:1], 64")
    stamp()
    a(f"v_lshrrev_b32 v{vT}, 6, v0")
    a(f"v_and_b32 v{vLane}, 63, v0")
    a(f"v_readfirstlane_b32 s{sW}, v{vT}")
    a(f"v_lshrrev_b32 v{vG}, 4, v{vLane}")
    a(f"v_and_b32 v{vN}, 15, v0")
    if P.map == "lo":
        a(f"s_and_b32 s{sGrp}, s2, 7")
        a(f"s_lshr_b32 s{sSp}, s2, 3")
    else:
        a(f"s_lshr_b32 s{sGrp}, s2, 5")
        a(f"s_and_b32 s{sSp}, s2, 31")
    a(f"v_lshlrev_b32 v{vT + 1}, 8, v{vG}")
    a(f"v_xor_b32 v{vT + 2}, v{vN}, v{vG}")
    for i in range(4):
        if i:
            a(f"v_xor_b32 v{vT + 3}, {4 * i}, v{vT + 2}")
            a(f"v_lshl_add_u32 v{vKs + i}, v{vT + 3}, 4, v{vT + 1}")
        else:
            a(f"v_lshl_add_u32 v{vKs + i}, v{vT + 2}, 4, v{vT + 1}")
    a(f"v_and_b32 v{vT + 4}, 7, v{vN}")
    a(f"v_lshlrev_b32 v{vT + 4}, 8, v{vT + 4}")
    a(f"v_lshl_add_u32 v{vT + 4}, v{vG}, 4, v{vT + 4}")
    a(f"s_mul_i32 s{sLds}, s{sW}, {RING}")
    a(f"s_lshl_b32 s{sBase}, s{sGrp}, 23")
    if P.order == "contig":
        stride = 4096
        a(f"s_lshl_b32 s{sOff}, s{sSp}, 18")
        a(f"s_add_u32 s{sBase}, s{sBase}, s{sOff}")
        a(f"s_mul_i32 s{sOff}, s{sW}, {KW * 256}")
        a(f"s_add_u32 s{sBase}, s{sBase}, s{sOff}")
    elif P.order == "wgil":
        stride = 4096 * W
        a(f"s_lshl_b32 s{sOff}, s{sSp}, 18")
        a(f"s_add_u32 s{sBase}, s{sBase}, s{sOff}")
        a(f"s_lshl_b32 s{sOff}, s{sW}, 12")
        a(f"s_add_u32 s{sBase}, s{sBase}, s{sOff}")
    else:
        stride = 4096 * W * 32
        a(f"s_mul_i32 s{sOff}, s{sSp}, {W}")
        a(f"s_add_u32 s{sOff}, s{sOff}, s{sW}")
        a(f"s_lshl_b32 s{sOff}, s{sOff}, 12")
        a(f"s_add_u32 s{sBase}, s{sBase}, s{sOff}")
    a(f"s_lshl_b32 s67, s{sGrp}, 11")
    a("s_waitcnt lgkmcnt(0)")
    srd(a, 32, 4, 16384)
    srd(a, 24, 6, 1 << 26)
    for j in range(4):
        a.vmem(f"buffer_load_dwordx4 {vr(vQ + 4 * j, 4)}, v{vT + 4}, s[32:35], s67 offen offset:{64 * j}", "q")
    srd(a, 28, 8, 1 << 26)

    tiles = [("k", t) for t in range(NT)] + [("v", t) for t in range(NT)]

    def issue(idx):
        kind, t = tiles[idx]
        slot = idx % NS
        a(f"s_add_u32 m0, s{sLds}, {slot * 4096}")
        a(f"s_add_u32 s{sOff}, s{sBase}, {t * stride}")
        for i in range(4):
            if kind == "k":
                a.vmem(f"buffer_load_dwordx4 v{vKs + i}, s[24:27], s{sOff} offen offset:{1024 * i}{pol} lds", ("t", idx))
            else:
                a.vmem(f"buffer_load_dwordx4 v{vVs + (i & 1)}, s[28:31], s{sOff} offen offset:{1024 * i}{pol} lds", ("t", idx))

    def vsrc():
        a(f"v_lshlrev_b32 v{vT + 2}, 1, v{vG}")
        a(f"v_xor_b32 v{vT + 2}, v{vT + 2}, v{vN}")
        a(f"v_lshl_add_u32 v{vVs}, v{vT + 2}, 4, v{vT + 1}")
        a(f"v_xor_b32 v{vT + 2}, 8, v{vT + 2}")
        a(f"v_lshl_add_u32 v{vVs + 1}, v{vT + 2}, 4, v{vT + 1}")

    if NS > NT:
        vsrc()
    for idx in range(min(NS, len(tiles))):
        issue(idx)
    if NS <= NT:
        vsrc()
    srd(a, 36, 20, 1 << 28)
    srd(a, 40, 16, 16384)
    srd(a, 44, 18, 256)
    srd(a, 48, 10, 2048)
    srd(a, 52, 12, 2048)
    a("s_load_dword s65, s[14:15], 0")
    a(f"s_lshl_b32 s67, s{sGrp}, 8")
    a(f"v_lshlrev_b32 v{vT + 4}, 4, v{vG}")
    a(f"v_lshlrev_b32 v{vT + 5}, 3, v{vG}")
    for j in range(4):
        a.vmem(f"buffer_load_dwordx4 {vr(vKt + 4 * j, 4)}, v{vT + 4}, s[48:51], s67 offen offset:{64 * j}", "kt")
    for t in range(8):
        a.vmem(f"buffer_load_dwordx2 {vr(vVt + 2 * t, 2)}, v{vT + 5}, s[52:55], s67 offen offset:{32 * t}", "vt")
    a(f"v_lshrrev_b32 v{vT + 6}, 3, v{vTid}")
    a(f"v_lshlrev_b32 v{vT + 6}, 12, v{vT + 6}")
    a(f"v_and_b32 v{vT + 7}, 7, v{vTid}")
    a(f"v_lshl_add_u32 v{vPub}, v{vT + 7}, 4, v{vT + 6}")
    a(f"s_lshl_b32 s68, s{sGrp}, 17")
    a(f"s_lshl_b32 s69, s{sSp}, 7")
    a(f"s_add_u32 s68, s68, s69")
    a(f"s_lshl_b32 s67, s{sGrp}, 12")
    a(f"s_add_u32 s69, s69, s67")
    a(f"s_add_u32 s69, s69, {WS_ML}")
    if one:
        for c in range(4):
            a(f"v_mov_b32 v{vSt + c}, -1")
        if W > 4:
            a(f"v_cmp_gt_u32 vcc, 256, v{vTid}")
            a(f"v_mov_b32 v{vT + 6}, 0x20000000")
            a("s_nop 0")
            a(f"v_cndmask_b32 v{vPub}, v{vT + 6}, v{vPub}, vcc")
        a.vmem(f"buffer_store_dwordx4 {vr(vSt, 4)}, v{vPub}, s[36:39], s68 offen sc1", "clr")
        a(f"v_cmp_gt_u32 vcc, 8, v{vTid}")
        a(f"v_mov_b32 v{vT + 6}, 0x20000000")
        a(f"v_lshlrev_b32 v{vT + 7}, 3, v{vTid}")
        a(f"v_cndmask_b32 v{vT + 6}, v{vT + 6}, v{vT + 7}, vcc")
        a.vmem(f"buffer_store_dwordx2 {vr(vSt, 2)}, v{vT + 6}, s[36:39], s69 offen sc1", "clr")
    for j in range(4):
        a(f"v_or_b32 v{vT + 2}, {4 * j}, v{vG}")
        a(f"v_xor_b32 v{vT + 2}, v{vT + 2}, v{vN}")
        a(f"v_lshlrev_b32 v{vT + 2}, 4, v{vT + 2}")
        a(f"v_lshl_add_u32 v{vT + 2}, v{vN}, 8, v{vT + 2}")
        a(f"v_add_u32 v{vKr + j}, s{sLds}, v{vT + 2}")
    a(f"v_lshrrev_b32 v{vT + 2}, 2, v{vN}")
    a(f"v_lshl_add_u32 v{vT + 2}, v{vG}, 2, v{vT + 2}")
    a(f"v_and_b32 v{vT + 3}, 3, v{vN}")
    a(f"v_lshlrev_b32 v{vT + 3}, 3, v{vT + 3}")
    a(f"v_lshl_add_u32 v{vT + 3}, v{vT + 2}, 8, v{vT + 3}")
    a(f"v_add_u32 v{vT + 3}, s{sLds}, v{vT + 3}")
    a(f"v_and_b32 v{vT + 2}, 7, v{vT + 2}")
    for t in range(8):
        a(f"v_xor_b32 v{vT + 4}, {t}, v{vT + 2}")
        a(f"v_lshl_add_u32 v{vVr + t}, v{vT + 4}, 5, v{vT + 3}")
    a(f"s_mov_b32 s{sC}, {f32bits(CSC)}")
    a(f"s_or_b32 s{sTree}, s{sSp}, s{sW}")

    nxt = min(NS, len(tiles))
    for t in range(NT):
        idx = t
        slot = idx % NS
        a.wait_vm(("t", idx))
        if t == 0:
            stamp()
        if P.compute:
            for j in range(4):
                a(f"ds_read_b128 {vr(vF + 4 * j, 4)}, v{vKr + j} offset:{slot * 4096}")
            a("s_waitcnt lgkmcnt(0)")
        if nxt < len(tiles):
            issue(nxt)
            nxt += 1
        if P.compute:
            for j in range(4):
                c = "0" if j == 0 else vr(vS + 4 * t, 4)
                a(f"v_mfma_f32_16x16x32_bf16 {vr(vS + 4 * t, 4)}, {vr(vF + 4 * j, 4)}, {vr(vQ + 4 * j, 4)}, {c}")
    stamp()
    if "kt" in a.vq:
        a.wait_vm("vt")
    if one and "clr" in a.vq:
        a.wait_vm("clr")
    for j in range(4):
        c = "0" if j == 0 else vr(vSt, 4)
        a(f"v_mfma_f32_16x16x32_bf16 {vr(vSt, 4)}, {vr(vKt + 4 * j, 4)}, {vr(vQ + 4 * j, 4)}, {c}")
    a("s_waitcnt lgkmcnt(0)")
    a(f"s_lshr_b32 s67, s{sGrp}, 2")
    a(f"s_lshl_b32 s67, s67, 4")
    a(f"s_lshr_b32 s{sMask}, s{sMask}, s67")
    a(f"s_lshl_b32 s{sMask}, s{sMask}, 16")
    a(f"v_mov_b32 v{vT + 5}, s{sMask}")
    a(f"v_sub_f32 v{vT + 5}, 1.0, v{vT + 5}")
    a(f"v_mul_f32 v{vT + 5}, {f32bits(-1e9 * math.log2(math.e))}, v{vT + 5}")
    a("s_nop 4")
    regs = [vS + i for i in range(NT * 4)]
    a(f"v_max3_f32 v{vT}, v{regs[0]}, v{regs[1]}, v{regs[2]}")
    a(f"v_max3_f32 v{vT + 1}, v{regs[3]}, v{regs[4]}, v{regs[5]}")
    regs = regs[6:]
    k = 0
    while regs:
        a(f"v_max3_f32 v{vT + k}, v{vT + k}, v{regs[0]}, v{regs[1]}")
        regs = regs[2:]
        k ^= 1
    a(f"v_max_f32 v{vM}, v{vT}, v{vT + 1}")
    a(f"v_mul_f32 v{vM}, s{sC}, v{vM}")
    a(f"v_fma_f32 v{vT + 5}, v{vSt}, s{sC}, v{vT + 5}")
    a(f"s_cmp_eq_u32 s{sTree}, 0")
    a("s_cbranch_scc1 L_tree1")
    a(f"v_mov_b32 v{vT + 5}, 0xff800000")
    a.label("L_tree1")
    a(f"v_max_f32 v{vM}, v{vM}, v{vT + 5}")
    a(f"v_mov_b32 v{vT}, v{vM}")
    a("s_nop 1")
    a(f"v_permlane16_swap_b32 v{vM}, v{vT}")
    a("s_nop 1")
    a(f"v_max_f32 v{vM}, v{vM}, v{vT}")
    a(f"v_mov_b32 v{vT}, v{vM}")
    a("s_nop 1")
    a(f"v_permlane32_swap_b32 v{vM}, v{vT}")
    a("s_nop 1")
    a(f"v_max_f32 v{vM}, v{vM}, v{vT}")
    a(f"s_lshl_b32 s67, s{sW}, 2")
    a(f"v_lshlrev_b32 v{vT + 6}, {2 + int(math.log2(W))}, v{vN}")
    a(f"v_add_u32 v{vT + 6}, {SCR}, v{vT + 6}")
    a(f"v_add_u32 v{vT + 7}, s67, v{vT + 6}")
    a(f"ds_write_b32 v{vT + 7}, v{vM}")
    a("s_waitcnt lgkmcnt(0)")
    a("s_barrier")
    a(f"ds_read_b128 {vr(vF, 4)}, v{vT + 6}")
    if W == 8:
        a(f"ds_read_b128 {vr(vF + 4, 4)}, v{vT + 6} offset:16")
    if one:
        a(f"s_cmp_lg_u32 s{sW}, 0")
        a("s_cbranch_scc1 L_nosig")
        a(f"v_mov_b32 v{vT}, 1")
        a(f"s_lshl_b32 s67, s{sGrp}, 2")
        a("s_mov_b64 exec, 1")
        a(f"buffer_atomic_add v{vT}, off, s[44:47], s67")
        a("s_mov_b64 exec, -1")
        a.label("L_nosig")
    a("s_waitcnt lgkmcnt(0)")
    a(f"v_max3_f32 v{vM}, v{vF}, v{vF + 1}, v{vF + 2}")
    if W == 8:
        a(f"v_max3_f32 v{vM}, v{vM}, v{vF + 3}, v{vF + 4}")
        a(f"v_max3_f32 v{vM}, v{vM}, v{vF + 5}, v{vF + 6}")
        a(f"v_max_f32 v{vM}, v{vM}, v{vF + 7}")
    else:
        a(f"v_max_f32 v{vM}, v{vM}, v{vF + 3}")
    for i in range(NT * 4):
        a(f"v_fma_f32 v{vS + i}, v{vS + i}, s{sC}, -v{vM}")
    a(f"v_sub_f32 v{vT + 5}, v{vT + 5}, v{vM}")
    for i in range(NT * 4):
        a(f"v_exp_f32 v{vS + i}, v{vS + i}")
    a(f"v_exp_f32 v{vT + 5}, v{vT + 5}")
    a(f"v_add_f32 v{vT}, v{vS}, v{vS + 1}")
    a(f"v_add_f32 v{vT + 1}, v{vS + 2}, v{vS + 3}")
    for i in range(4, NT * 4, 2):
        a(f"v_add_f32 v{vT}, v{vT}, v{vS + i}")
        a(f"v_add_f32 v{vT + 1}, v{vT + 1}, v{vS + i + 1}")
    for i in range(NT * 2):
        a(f"v_cvt_pk_bf16_f32 v{vP + i}, v{vS + 2 * i}, v{vS + 2 * i + 1}")
    a(f"v_add_f32 v{vL}, v{vT}, v{vT + 1}")
    a(f"v_mov_b32 v{vT}, v{vL}")
    a("s_nop 1")
    a(f"v_permlane16_swap_b32 v{vL}, v{vT}")
    a("s_nop 1")
    a(f"v_add_f32 v{vL}, v{vL}, v{vT}")
    a(f"v_mov_b32 v{vT}, v{vL}")
    a("s_nop 1")
    a(f"v_permlane32_swap_b32 v{vL}, v{vT}")
    a("s_nop 1")
    a(f"v_add_f32 v{vL}, v{vL}, v{vT}")
    a(f"v_add_f32 v{vL}, v{vL}, v{vT + 5}")
    a(f"ds_write_b32 v{vT + 7}, v{vL} offset:512")
    a(f"s_cmp_eq_u32 s{sTree}, 0")
    a("s_cbranch_scc1 L_tree2")
    for i in range(32):
        a(f"v_mov_b32 v{vAcc + i}, 0")
    a("s_branch L_tree3")
    a.label("L_tree2")
    for t in range(8):
        a(f"v_lshlrev_b32 v{vAcc + 4 * t}, 16, v{vVt + 2 * t}")
        a(f"v_and_b32 v{vAcc + 4 * t + 1}, 0xffff0000, v{vVt + 2 * t}")
        a(f"v_lshlrev_b32 v{vAcc + 4 * t + 2}, 16, v{vVt + 2 * t + 1}")
        a(f"v_and_b32 v{vAcc + 4 * t + 3}, 0xffff0000, v{vVt + 2 * t + 1}")
    for i in range(32):
        a(f"v_mul_f32 v{vAcc + i}, v{vT + 5}, v{vAcc + i}")
    a.label("L_tree3")
    stamp()
    for t in range(NT):
        idx = NT + t
        slot = idx % NS
        h = t & 1
        a.wait_vm(("t", idx))
        last = t == NT - 1
        if P.compute:
            for d in range(8):
                a(f"ds_read_b64_tr_b16 {vr(vF + 4 * d + 2 * h, 2)}, v{vVr + d} offset:{slot * 4096}")
            if not last:
                a("s_waitcnt lgkmcnt(0)")
        if one and (nxt == len(tiles) - 1 or (t == 0 and nxt == len(tiles))):
            a(f"s_lshl_b32 s67, s{sGrp}, 2")
            a.vmem(f"buffer_load_dword v{vCnt}, off, s[44:47], s67 sc1", "cnt")
        if nxt < len(tiles):
            issue(nxt)
            nxt += 1
        if P.compute and h == 1:
            for d in range(8):
                if last:
                    a(f"s_waitcnt lgkmcnt({7 - d})")
                a(f"v_mfma_f32_16x16x32_bf16 {vr(vAcc + 4 * d, 4)}, {vr(vF + 4 * d, 4)}, {vr(vP + 4 * (t // 2), 4)}, {vr(vAcc + 4 * d, 4)}")
    if "cnt" in a.vq:
        a.wait_vm("cnt")
    stamp()
    a(f"v_mul_u32_u24 v{vT}, 528, v{vN}")
    a(f"v_lshl_add_u32 v{vT}, v{vG}, 4, v{vT}")
    a(f"v_add_u32 v{vT}, s{sLds}, v{vT}")
    a(f"v_lshrrev_b32 v{vT + 1}, 5, v{vTid}")
    a(f"v_mul_u32_u24 v{vT + 1}, 528, v{vT + 1}")
    a(f"v_and_b32 v{vT + 2}, 31, v{vTid}")
    a(f"v_lshl_add_u32 v{vT + 1}, v{vT + 2}, 4, v{vT + 1}")
    per = max(1, 65536 // RING)
    nreg = (W + per - 1) // per
    for r in range(1, nreg):
        a(f"v_add_u32 v{vT + 1 + r}, {r * per * RING}, v{vT + 1}")
    a("s_mov_b32 s56, 0x00ff00ff")
    a("s_mov_b32 s57, 0x00ff00ff")
    a("s_mov_b64 exec, s[56:57]")
    for d in range(8):
        a(f"ds_write_b128 v{vT}, {vr(vAcc + 4 * d, 4)} offset:{64 * d}")
    a("s_mov_b64 exec, -1")
    a("s_waitcnt lgkmcnt(0)")
    a("s_barrier")
    if W > 4:
        a(f"s_cmp_ge_u32 s{sW}, 4")
        a("s_cbranch_scc1 L_fin")
    for w in range(W):
        a(f"ds_read_b128 {vr(vF + 4 * w, 4)}, v{vT + 1 + w // per} offset:{(w % per) * RING}")
    a(f"ds_read_b128 {vr(vAcc, 4)}, v{vT + 6} offset:512")
    if W == 8:
        a(f"ds_read_b128 {vr(vAcc + 4, 4)}, v{vT + 6} offset:528")
    nl = 1 if W == 4 else 2
    a(f"s_waitcnt lgkmcnt({W - 2 + nl})")
    for w in range(1, W):
        if w > 1:
            a(f"s_waitcnt lgkmcnt({W - 1 - w + nl})")
        for c in range(4):
            a(f"v_add_f32 v{vF + c}, v{vF + c}, v{vF + 4 * w + c}")
    if one:
        for c in range(4):
            a(f"v_min_u32 v{vF + c}, -2, v{vF + c}")
    ppol = " sc1" if one else ""
    a(f"buffer_store_dwordx4 {vr(vF, 4)}, v{vPub}, s[36:39], s68 offen{ppol}")
    a(f"s_cmp_lg_u32 s{sW}, 0")
    a("s_cbranch_scc1 L_fin")
    a("s_waitcnt lgkmcnt(0)")
    a(f"v_add_f32 v{vAcc}, v{vAcc}, v{vAcc + 1}")
    a(f"v_add_f32 v{vAcc + 2}, v{vAcc + 2}, v{vAcc + 3}")
    if W == 8:
        a(f"v_add_f32 v{vAcc + 4}, v{vAcc + 4}, v{vAcc + 5}")
        a(f"v_add_f32 v{vAcc + 6}, v{vAcc + 6}, v{vAcc + 7}")
        a(f"v_add_f32 v{vAcc}, v{vAcc}, v{vAcc + 4}")
        a(f"v_add_f32 v{vAcc + 2}, v{vAcc + 2}, v{vAcc + 6}")
    a(f"v_add_f32 v{vAcc + 1}, v{vAcc}, v{vAcc + 2}")
    a(f"v_min_u32 v{vAcc}, -2, v{vM}")
    a(f"v_min_u32 v{vAcc + 1}, -2, v{vAcc + 1}")
    a(f"v_lshlrev_b32 v{vT}, 3, v{vLane}")
    a("s_mov_b64 exec, 0xff")
    a(f"buffer_store_dwordx2 {vr(vAcc, 2)}, v{vT}, s[36:39], s69 offen{ppol}")
    a("s_mov_b64 exec, -1")
    stamp()
    if one:
        a(f"v_cmp_ne_u32 vcc, 32, v{vCnt}")
        a("s_cbranch_vccz L_cntok")
        a("s_mov_b32 s59, 0")
        a(f"s_lshl_b32 s67, s{sGrp}, 2")
        a.label("L_cnt")
        a(f"buffer_load_dword v{vCnt}, off, s[44:47], s67 sc1")
        a("s_waitcnt vmcnt(0)")
        a(f"v_cmp_ne_u32 vcc, 32, v{vCnt}")
        a("s_add_u32 s59, s59, 1")
        a(f"s_cmp_lt_u32 s59, {P.spin}")
        a("s_cselect_b64 vcc, vcc, 0")
        a("s_nop 0")
        a("s_cbranch_vccnz L_cnt")
        a.label("L_cntok")
        emit_consumer(a, P, True, sGrp, sSp, vLane, vS)
    a.label("L_fin")
    if P.stamp:
        a("s_mov_b64 exec, -1")
        a("s_waitcnt vmcnt(0)")
        stamp()
        a(f"s_getreg_b32 s90, hwreg(HW_REG_XCC_ID)")
        a(f"s_getreg_b32 s91, hwreg(HW_REG_HW_ID)")
        a("s_waitcnt lgkmcnt(0)")
        for i in range(8):
            if i < len(stamps):
                a(f"v_mov_b32 v{vS + i}, s{stamps[i]}")
            else:
                a(f"v_mov_b32 v{vS + i}, 0")
        a(f"v_mov_b32 v{vS + 8}, s90")
        a(f"v_mov_b32 v{vS + 9}, s91")
        a(f"v_mov_b32 v{vS + 10}, s59")
        a(f"v_mov_b32 v{vS + 11}, s{stamps[0] + 1}")
        a(f"s_mul_i32 s56, s2, {W}")
        a(f"s_add_u32 s56, s56, s{sW}")
        a(f"s_lshl_b32 s56, s56, 6")
        a(f"s_add_u32 s56, s56, {WS_STAMP}")
        a("s_mov_b64 exec, 1")
        for i in range(3):
            a(f"buffer_store_dwordx4 {vr(vS + 4 * i, 4)}, off, s[36:39], s56 offset:{16 * i}")
    a.label("L_end")
    a("s_endpgm")
    body = a.text()
    nv1 = a.nv
    out = HEADER
    if one:
        out += f"; @launch grid=(256,1,1) block=({64 * W},1,1) lds={LDS}\n"
    else:
        out += f"; @launch kernel=part_kernel grid=(256,1,1) block=({64 * W},1,1) lds={LDS}\n"
        out += f"; @launch kernel=comb_kernel grid=(256,1,1) block=(64,1,1) lds=0\n"
    out += '.amdgcn_target "amdgcn-amd-amdhsa--gfx950"\n.text\n' + body
    kds = kd(kname, nv1)
    if not one:
        b = Asm()
        b.lines.append(".globl comb_kernel\n.p2align 8\n.type comb_kernel,@function")
        b.label("comb_kernel")
        b("s_cmp_ge_u32 s2, 256")
        b("s_cbranch_scc1 L_end2")
        b("s_load_dwordx2 s[16:17], s[0:1], 48")
        b("s_load_dwordx2 s[20:21], s[0:1], 64")
        b("s_lshr_b32 s60, s2, 5")
        b("s_and_b32 s61, s2, 31")
        b("s_waitcnt lgkmcnt(0)")
        srd(b, 36, 20, 1 << 28)
        srd(b, 40, 16, 16384)
        emit_consumer(b, P, False, 60, 61, 0, 4)
        b.label("L_end2")
        b("s_endpgm")
        out += b.text()
        kds += kd("comb_kernel", 64)
    out += '.section .rodata,"a"\n' + kds
    return out


def main():
    ap = argparse.ArgumentParser()
    ap.add_argument("-W", type=int, default=4)
    ap.add_argument("--NS", type=int, default=8)
    ap.add_argument("--pol", default="nt")
    ap.add_argument("--outpol", default="")
    ap.add_argument("--map", default="lo")
    ap.add_argument("--order", default="contig")
    ap.add_argument("--mode", default="one")
    ap.add_argument("--stamp", type=int, default=0)
    ap.add_argument("--compute", type=int, default=1)
    ap.add_argument("--spin", type=int, default=200000)
    ap.add_argument("-o", default="-")
    P = ap.parse_args()
    if P.outpol:
        P.outpol = " " + P.outpol
    s = gen(P)
    if P.o == "-":
        sys.stdout.write(s)
    else:
        open(P.o, "w").write(s)


if __name__ == "__main__":
    main()
```

```python
import sys, argparse, math

NAME = "standalone__tree_speculative_verify_tree_attention_over_candidate_token_tree__decode"

HEADER = """; Kernarg layout (72 bytes, ptrs only, base s[0:1]):
"""


class Asm:
    def __init__(self):
        self.lines = []
        self.vq = []
        self.nv = 0

    def __call__(self, s):
        self.lines.append("    " + s)

    def label(self, s):
        self.lines.append(s + ":")

    def comment(self, s):
        self.lines.append("    ; " + s)

    def vreg(self, n=1, align=1):
        self.nv = (self.nv + align - 1) // align * align
        r = self.nv
        self.nv += n
        return r

    def vmem(self, s, tag):
        self(s)
        self.vq.append(tag)

    def wait_vm(self, tag, extra=""):
        idx = max(i for i, t in enumerate(self.vq) if t == tag)
        n = len(self.vq) - 1 - idx
        assert n <= 63, n
        self(f"s_waitcnt vmcnt({n}){extra}")
        self.vq = self.vq[idx + 1:]

    def text(self):
        return "\n".join(self.lines) + "\n"


def vr(b, n):
    return f"v[{b}:{b + n - 1}]" if n > 1 else f"v{b}"


def f32bits(x):
    import struct
    return struct.unpack("<I", struct.pack("<f", x))[0]


WS_O = 0
WS_ML = 1 << 20
WS_STAMP = 16 << 20


def emit_consumer(a, P, poll, sGrp, sJ, vLane, tmp):
    O = tmp
    ML = tmp + 16
    vA = tmp + 24
    vB = tmp + 25
    X = tmp + 26
    pol = " sc1" if poll else ""
    a(f"v_lshlrev_b32 v{vA}, 4, v{vLane}")
    a(f"v_lshrrev_b32 v{vB}, 3, v{vLane}")
    a(f"v_lshlrev_b32 v{vB}, 7, v{vB}")
    a(f"s_lshl_b32 s56, s{sGrp}, 17")
    a(f"s_lshl_b32 s57, s{sJ}, 12")
    a(f"s_add_u32 s56, s56, s57")
    a(f"s_lshl_b32 s57, s{sGrp}, 12")
    a(f"s_lshr_b32 s58, s{sJ}, 2")
    a(f"s_lshl_b32 s58, s58, 3")
    a(f"s_add_u32 s57, s57, s58")
    a(f"s_add_u32 s57, s57, {WS_ML}")
    if poll:
        a("s_mov_b32 s59, 0")
        a.label("L_poll")
    for i in range(4):
        a(f"buffer_load_dwordx4 {vr(O + 4 * i, 4)}, v{vA}, s[36:39], s56 offen offset:{1024 * i}{pol}")
    for i in range(4):
        a(f"buffer_load_dwordx2 {vr(ML + 2 * i, 2)}, v{vB}, s[36:39], s57 offen offset:{1024 * i}{pol}")
    a("s_waitcnt vmcnt(0)")
    if poll:
        a(f"v_max3_u32 v{X}, v{O}, v{O + 1}, v{O + 2}")
        a(f"v_max3_u32 v{X + 1}, v{O + 3}, v{O + 4}, v{O + 5}")
        regs = list(range(O + 6, O + 24))
        k = 0
        while regs:
            a(f"v_max3_u32 v{X + k}, v{X + k}, v{regs[0]}, v{regs[1]}")
            regs = regs[2:]
            k ^= 1
        a(f"v_max_u32 v{X}, v{X}, v{X + 1}")
        a(f"v_cmp_eq_u32 vcc, -1, v{X}")
        a("s_add_u32 s59, s59, 1")
        a(f"s_cmp_lt_u32 s59, {P.spin}")
        a("s_cselect_b64 vcc, vcc, 0")
        a("s_nop 0")
        a("s_cbranch_vccnz L_poll")
    M = X
    T = X + 1
    a(f"v_max3_f32 v{M}, v{ML}, v{ML + 2}, v{ML + 4}")
    a(f"v_max_f32 v{M}, v{M}, v{ML + 6}")
    a("s_nop 1")
    a(f"v_max_f32_dpp v{M}, v{M}, v{M} row_ror:8 row_mask:0xf bank_mask:0xf")
    a(f"v_mov_b32 v{T}, v{M}")
    a("s_nop 1")
    a(f"v_permlane16_swap_b32 v{M}, v{T}")
    a("s_nop 1")
    a(f"v_max_f32 v{M}, v{M}, v{T}")
    a(f"v_mov_b32 v{T}, v{M}")
    a("s_nop 1")
    a(f"v_permlane32_swap_b32 v{M}, v{T}")
    a("s_nop 1")
    a(f"v_max_f32 v{M}, v{M}, v{T}")
    Wt = X + 2
    for i in range(4):
        a(f"v_sub_f32 v{Wt + i}, v{ML + 2 * i}, v{M}")
    for i in range(4):
        a(f"v_exp_f32 v{Wt + i}, v{Wt + i}")
    R = X + 6
    a("s_nop 0")
    for c in range(4):
        a(f"v_mul_f32 v{R + c}, v{Wt}, v{O + c}")
    a(f"v_mul_f32 v{R + 4}, v{Wt}, v{ML + 1}")
    for i in range(1, 4):
        for c in range(4):
            a(f"v_fmac_f32 v{R + c}, v{Wt + i}, v{O + 4 * i + c}")
        a(f"v_fmac_f32 v{R + 4}, v{Wt + i}, v{ML + 2 * i + 1}")
    a("s_nop 1")
    for c in range(5):
        a(f"v_add_f32_dpp v{R + c}, v{R + c}, v{R + c} row_ror:8 row_mask:0xf bank_mask:0xf")
    C = O
    for c in range(5):
        a(f"v_mov_b32 v{C + c}, v{R + c}")
    a("s_nop 1")
    for c in range(5):
        a(f"v_permlane16_swap_b32 v{R + c}, v{C + c}")
    a("s_nop 1")
    for c in range(5):
        a(f"v_add_f32 v{R + c}, v{R + c}, v{C + c}")
    for c in range(5):
        a(f"v_mov_b32 v{C + c}, v{R + c}")
    a("s_nop 1")
    for c in range(5):
        a(f"v_permlane32_swap_b32 v{R + c}, v{C + c}")
    a("s_nop 1")
    for c in range(5):
        a(f"v_add_f32 v{R + c}, v{R + c}, v{C + c}")
    a(f"v_rcp_f32 v{R + 4}, v{R + 4}")
    a(f"s_lshl_b32 s56, s{sGrp}, 11")
    a(f"s_lshl_b32 s57, s{sJ}, 6")
    a(f"s_add_u32 s56, s56, s57")
    a(f"v_lshlrev_b32 v{vA}, 3, v{vLane}")
    for c in range(4):
        a(f"v_mul_f32 v{R + c}, v{R + c}, v{R + 4}")
    a(f"v_cvt_pk_bf16_f32 v{C}, v{R}, v{R + 1}")
    a(f"v_cvt_pk_bf16_f32 v{C + 1}, v{R + 2}, v{R + 3}")
    a("s_mov_b64 exec, 0xff")
    a(f"buffer_store_dwordx2 {vr(C, 2)}, v{vA}, s[40:43], s56 offen{P.outpol}")


def srd(a, d, b, size):
    a(f"s_mov_b32 s{d}, s{b}")
    a(f"s_and_b32 s{d + 1}, s{b + 1}, 0xffff")
    a(f"s_mov_b32 s{d + 2}, {size}")
    a(f"s_mov_b32 s{d + 3}, 0x00020000")


def kd(name, nv, ns=96):
    nv = (nv + 7) // 8 * 8
    return f""".p2align 6
.amdhsa_kernel {name}
  .amdhsa_next_free_vgpr {nv}
  .amdhsa_next_free_sgpr {ns}
  .amdhsa_accum_offset {min(nv, 256)}
  .amdhsa_group_segment_fixed_size 0
  .amdhsa_kernarg_size 72
  .amdhsa_user_sgpr_count 2
  .amdhsa_user_sgpr_kernarg_segment_ptr 1
  .amdhsa_system_sgpr_workgroup_id_x 1
  .amdhsa_float_denorm_mode_32 3
.end_amdhsa_kernel
"""


def gen(P):
    W, NS = P.W, P.NS
    KW = 1024 // W
    NT = KW // 16
    RING = NS * 4096
    SCR = W * RING
    LDS = SCR + 1024
    one = P.mode == "one"
    pol = (" " + P.pol) if P.pol else ""
    CSC = (128 ** -0.5) * math.log2(math.e)

    a = Asm()
    kname = NAME + "_kernel" if one else "part_kernel"
    a.lines.append(f".globl {kname}\n.p2align 8\n.type {kname},@function")
    a.label(kname)
    vTid = a.vreg()
    vLane = a.vreg()
    vG = a.vreg()
    vN = a.vreg()
    vT = a.vreg(8, 4)
    vKs = a.vreg(4)
    vVs = a.vreg(2)
    vKr = a.vreg(4)
    vVr = a.vreg(8)
    vPub = a.vreg()
    vM = a.vreg()
    vL = a.vreg()
    vCnt = a.vreg()
    vQ = a.vreg(16, 4)
    vKt = a.vreg(16, 4)
    vVt = a.vreg(16, 4)
    vF = a.vreg(32, 4)
    vAcc = a.vreg(32, 4)
    vS = a.vreg(NT * 4, 4)
    vP = a.vreg(NT * 2, 4)
    vSt = a.vreg(4, 4)
    sW, sLds, sGrp, sSp, sBase, sOff = 22, 23, 60, 61, 62, 63
    sTree, sMask, sC = 64, 65, 66
    stamps = []

    vFine = a.vreg()
    fine = []

    def stamp():
        if P.stamp:
            r = 70 + 2 * len(stamps)
            stamps.append(r)
            a(f"s_memrealtime s[{r}:{r + 1}]")

    def fstamp(name):
        if P.stamp >= 2:
            a("s_memrealtime s[92:93]")
            a("s_waitcnt lgkmcnt(0)")
            a(f"v_writelane_b32 v{vFine}, s92, {len(fine)}")
            fine.append(name)

    if P.null:
        a("s_endpgm")
    a("s_cmp_ge_u32 s2, 256")
    a("s_cbranch_scc1 L_end")
    a("s_load_dwordx16 s[4:19], s[0:1], 0")
    a("s_load_dwordx2 s[20:21], s[0:1], 64")
    stamp()
    a(f"v_lshrrev_b32 v{vT}, 6, v0")
    a(f"v_and_b32 v{vLane}, 63, v0")
    a(f"v_readfirstlane_b32 s{sW}, v{vT}")
    a(f"v_lshrrev_b32 v{vG}, 4, v{vLane}")
    a(f"v_and_b32 v{vN}, 15, v0")
    if P.map == "lo":
        a(f"s_and_b32 s{sGrp}, s2, 7")
        a(f"s_lshr_b32 s{sSp}, s2, 3")
    else:
        a(f"s_lshr_b32 s{sGrp}, s2, 5")
        a(f"s_and_b32 s{sSp}, s2, 31")
    a(f"v_lshlrev_b32 v{vT + 1}, 8, v{vG}")
    a(f"v_xor_b32 v{vT + 2}, v{vN}, v{vG}")
    for i in range(4):
        if i:
            a(f"v_xor_b32 v{vT + 3}, {4 * i}, v{vT + 2}")
            a(f"v_lshl_add_u32 v{vKs + i}, v{vT + 3}, 4, v{vT + 1}")
        else:
            a(f"v_lshl_add_u32 v{vKs + i}, v{vT + 2}, 4, v{vT + 1}")
    a(f"v_and_b32 v{vT + 4}, 7, v{vN}")
    a(f"v_lshlrev_b32 v{vT + 4}, 8, v{vT + 4}")
    a(f"v_lshl_add_u32 v{vT + 4}, v{vG}, 4, v{vT + 4}")
    a(f"s_mul_i32 s{sLds}, s{sW}, {RING}")
    a(f"s_lshl_b32 s{sBase}, s{sGrp}, 23")
    if P.order == "contig":
        stride = 4096
        a(f"s_lshl_b32 s{sOff}, s{sSp}, 18")
        a(f"s_add_u32 s{sBase}, s{sBase}, s{sOff}")
        a(f"s_mul_i32 s{sOff}, s{sW}, {KW * 256}")
        a(f"s_add_u32 s{sBase}, s{sBase}, s{sOff}")
    elif P.order == "wgil":
        stride = 4096 * W
        a(f"s_lshl_b32 s{sOff}, s{sSp}, 18")
        a(f"s_add_u32 s{sBase}, s{sBase}, s{sOff}")
        a(f"s_lshl_b32 s{sOff}, s{sW}, 12")
        a(f"s_add_u32 s{sBase}, s{sBase}, s{sOff}")
    else:
        stride = 4096 * W * 32
        a(f"s_mul_i32 s{sOff}, s{sSp}, {W}")
        a(f"s_add_u32 s{sOff}, s{sOff}, s{sW}")
        a(f"s_lshl_b32 s{sOff}, s{sOff}, 12")
        a(f"s_add_u32 s{sBase}, s{sBase}, s{sOff}")
    a(f"s_lshl_b32 s67, s{sGrp}, 11")
    a("s_waitcnt lgkmcnt(0)")
    fstamp("karg")
    srd(a, 32, 4, 16384)
    srd(a, 24, 6, 1 << 26)
    for j in range(4):
        a.vmem(f"buffer_load_dwordx4 {vr(vQ + 4 * j, 4)}, v{vT + 4}, s[32:35], s67 offen offset:{64 * j}", "q")
    srd(a, 28, 8, 1 << 26)

    tiles = [("k", t) for t in range(NT)] + [("v", t) for t in range(NT)]

    def issue(idx):
        kind, t = tiles[idx]
        slot = idx % NS
        a(f"s_add_u32 m0, s{sLds}, {slot * 4096}")
        a(f"s_add_u32 s{sOff}, s{sBase}, {t * stride}")
        for i in range(4):
            if kind == "k":
                a.vmem(f"buffer_load_dwordx4 v{vKs + i}, s[24:27], s{sOff} offen offset:{1024 * i}{pol} lds", ("t", idx))
            else:
                a.vmem(f"buffer_load_dwordx4 v{vVs + (i & 1)}, s[28:31], s{sOff} offen offset:{1024 * i}{pol} lds", ("t", idx))

    def vsrc():
        a(f"v_lshlrev_b32 v{vT + 2}, 1, v{vG}")
        a(f"v_xor_b32 v{vT + 2}, v{vT + 2}, v{vN}")
        a(f"v_lshl_add_u32 v{vVs}, v{vT + 2}, 4, v{vT + 1}")
        a(f"v_xor_b32 v{vT + 2}, 8, v{vT + 2}")
        a(f"v_lshl_add_u32 v{vVs + 1}, v{vT + 2}, 4, v{vT + 1}")

    if NS > NT:
        vsrc()
    for idx in range(min(NS, len(tiles))):
        issue(idx)
    fstamp("issued")
    if NS <= NT:
        vsrc()
    srd(a, 36, 20, 1 << 28)
    srd(a, 40, 16, 16384)
    srd(a, 44, 18, 256)
    srd(a, 48, 10, 2048)
    srd(a, 52, 12, 2048)
    a("s_load_dword s65, s[14:15], 0")
    a(f"s_lshl_b32 s67, s{sGrp}, 8")
    a(f"v_lshlrev_b32 v{vT + 4}, 4, v{vG}")
    a(f"v_lshlrev_b32 v{vT + 5}, 3, v{vG}")
    for j in range(4):
        a.vmem(f"buffer_load_dwordx4 {vr(vKt + 4 * j, 4)}, v{vT + 4}, s[48:51], s67 offen offset:{64 * j}", "kt")
    for t in range(8):
        a.vmem(f"buffer_load_dwordx2 {vr(vVt + 2 * t, 2)}, v{vT + 5}, s[52:55], s67 offen offset:{32 * t}", "vt")
    a(f"v_lshrrev_b32 v{vT + 6}, 3, v{vTid}")
    a(f"v_lshlrev_b32 v{vT + 6}, 12, v{vT + 6}")
    a(f"v_and_b32 v{vT + 7}, 7, v{vTid}")
    a(f"v_lshl_add_u32 v{vPub}, v{vT + 7}, 4, v{vT + 6}")
    a(f"s_lshl_b32 s68, s{sGrp}, 17")
    a(f"s_lshl_b32 s69, s{sSp}, 7")
    a(f"s_add_u32 s68, s68, s69")
    a(f"s_lshl_b32 s67, s{sGrp}, 12")
    a(f"s_add_u32 s69, s69, s67")
    a(f"s_add_u32 s69, s69, {WS_ML}")
    if one:
        for c in range(4):
            a(f"v_mov_b32 v{vSt + c}, -1")
        if W > 4:
            a(f"v_cmp_gt_u32 vcc, 256, v{vTid}")
            a(f"v_mov_b32 v{vT + 6}, 0x20000000")
            a("s_nop 0")
            a(f"v_cndmask_b32 v{vPub}, v{vT + 6}, v{vPub}, vcc")
        a.vmem(f"buffer_store_dwordx4 {vr(vSt, 4)}, v{vPub}, s[36:39], s68 offen sc1", "clr")
        a(f"v_cmp_gt_u32 vcc, 8, v{vTid}")
        a(f"v_mov_b32 v{vT + 6}, 0x20000000")
        a(f"v_lshlrev_b32 v{vT + 7}, 3, v{vTid}")
        a(f"v_cndmask_b32 v{vT + 6}, v{vT + 6}, v{vT + 7}, vcc")
        a.vmem(f"buffer_store_dwordx2 {vr(vSt, 2)}, v{vT + 6}, s[36:39], s69 offen sc1", "clr")
    for j in range(4):
        a(f"v_or_b32 v{vT + 2}, {4 * j}, v{vG}")
        a(f"v_xor_b32 v{vT + 2}, v{vT + 2}, v{vN}")
        a(f"v_lshlrev_b32 v{vT + 2}, 4, v{vT + 2}")
        a(f"v_lshl_add_u32 v{vT + 2}, v{vN}, 8, v{vT + 2}")
        a(f"v_add_u32 v{vKr + j}, s{sLds}, v{vT + 2}")
    a(f"v_lshrrev_b32 v{vT + 2}, 2, v{vN}")
    a(f"v_lshl_add_u32 v{vT + 2}, v{vG}, 2, v{vT + 2}")
    a(f"v_and_b32 v{vT + 3}, 3, v{vN}")
    a(f"v_lshlrev_b32 v{vT + 3}, 3, v{vT + 3}")
    a(f"v_lshl_add_u32 v{vT + 3}, v{vT + 2}, 8, v{vT + 3}")
    a(f"v_add_u32 v{vT + 3}, s{sLds}, v{vT + 3}")
    a(f"v_and_b32 v{vT + 2}, 7, v{vT + 2}")
    for t in range(8):
        a(f"v_xor_b32 v{vT + 4}, {t}, v{vT + 2}")
        a(f"v_lshl_add_u32 v{vVr + t}, v{vT + 4}, 5, v{vT + 3}")
    a(f"s_mov_b32 s{sC}, {f32bits(CSC)}")
    a(f"s_or_b32 s{sTree}, s{sSp}, s{sW}")

    nxt = min(NS, len(tiles))
    for t in range(NT):
        idx = t
        slot = idx % NS
        if t == 0 and P.stamp >= 2:
            fstamp("pre")
            a.wait_vm("q")
            fstamp("q")
        a.wait_vm(("t", idx))
        fstamp(f"k{t}")
        if t == 0:
            stamp()
        if P.compute:
            for j in range(4):
                a(f"ds_read_b128 {vr(vF + 4 * j, 4)}, v{vKr + j} offset:{slot * 4096}")
            a("s_waitcnt lgkmcnt(0)")
        if nxt < len(tiles):
            issue(nxt)
            nxt += 1
        if P.compute:
            for j in range(4):
                c = "0" if j == 0 else vr(vS + 4 * t, 4)
                a(f"v_mfma_f32_16x16x32_bf16 {vr(vS + 4 * t, 4)}, {vr(vF + 4 * j, 4)}, {vr(vQ + 4 * j, 4)}, {c}")
    stamp()
    if "kt" in a.vq:
        a.wait_vm("vt")
    if one and "clr" in a.vq:
        a.wait_vm("clr")
    for j in range(4):
        c = "0" if j == 0 else vr(vSt, 4)
        a(f"v_mfma_f32_16x16x32_bf16 {vr(vSt, 4)}, {vr(vKt + 4 * j, 4)}, {vr(vQ + 4 * j, 4)}, {c}")
    a("s_waitcnt lgkmcnt(0)")
    a(f"s_lshr_b32 s67, s{sGrp}, 2")
    a(f"s_lshl_b32 s67, s67, 4")
    a(f"s_lshr_b32 s{sMask}, s{sMask}, s67")
    a(f"s_lshl_b32 s{sMask}, s{sMask}, 16")
    a(f"v_mov_b32 v{vT + 5}, s{sMask}")
    a(f"v_sub_f32 v{vT + 5}, 1.0, v{vT + 5}")
    a(f"v_mul_f32 v{vT + 5}, {f32bits(-1e9 * math.log2(math.e))}, v{vT + 5}")
    a("s_nop 4")
    regs = [vS + i for i in range(NT * 4)]
    a(f"v_max3_f32 v{vT}, v{regs[0]}, v{regs[1]}, v{regs[2]}")
    a(f"v_max3_f32 v{vT + 1}, v{regs[3]}, v{regs[4]}, v{regs[5]}")
    regs = regs[6:]
    k = 0
    while regs:
        a(f"v_max3_f32 v{vT + k}, v{vT + k}, v{regs[0]}, v{regs[1]}")
        regs = regs[2:]
        k ^= 1
    a(f"v_max_f32 v{vM}, v{vT}, v{vT + 1}")
    a(f"v_mul_f32 v{vM}, s{sC}, v{vM}")
    a(f"v_fma_f32 v{vT + 5}, v{vSt}, s{sC}, v{vT + 5}")
    a(f"s_cmp_eq_u32 s{sTree}, 0")
    a("s_cbranch_scc1 L_tree1")
    a(f"v_mov_b32 v{vT + 5}, 0xff800000")
    a.label("L_tree1")
    a(f"v_max_f32 v{vM}, v{vM}, v{vT + 5}")
    a(f"v_mov_b32 v{vT}, v{vM}")
    a("s_nop 1")
    a(f"v_permlane16_swap_b32 v{vM}, v{vT}")
    a("s_nop 1")
    a(f"v_max_f32 v{vM}, v{vM}, v{vT}")
    a(f"v_mov_b32 v{vT}, v{vM}")
    a("s_nop 1")
    a(f"v_permlane32_swap_b32 v{vM}, v{vT}")
    a("s_nop 1")
    a(f"v_max_f32 v{vM}, v{vM}, v{vT}")
    a(f"s_lshl_b32 s67, s{sW}, 2")
    a(f"v_lshlrev_b32 v{vT + 6}, {2 + int(math.log2(W))}, v{vN}")
    a(f"v_add_u32 v{vT + 6}, {SCR}, v{vT + 6}")
    a(f"v_add_u32 v{vT + 7}, s67, v{vT + 6}")
    a(f"ds_write_b32 v{vT + 7}, v{vM}")
    a("s_waitcnt lgkmcnt(0)")
    a("s_barrier")
    a(f"ds_read_b128 {vr(vF, 4)}, v{vT + 6}")
    if W == 8:
        a(f"ds_read_b128 {vr(vF + 4, 4)}, v{vT + 6} offset:16")
    if one:
        a(f"s_cmp_lg_u32 s{sW}, 0")
        a("s_cbranch_scc1 L_nosig")
        a(f"v_mov_b32 v{vT}, 1")
        a(f"s_lshl_b32 s67, s{sGrp}, 2")
        a("s_mov_b64 exec, 1")
        a(f"buffer_atomic_add v{vT}, off, s[44:47], s67")
        a("s_mov_b64 exec, -1")
        a.label("L_nosig")
    a("s_waitcnt lgkmcnt(0)")
    a(f"v_max3_f32 v{vM}, v{vF}, v{vF + 1}, v{vF + 2}")
    if W == 8:
        a(f"v_max3_f32 v{vM}, v{vM}, v{vF + 3}, v{vF + 4}")
        a(f"v_max3_f32 v{vM}, v{vM}, v{vF + 5}, v{vF + 6}")
        a(f"v_max_f32 v{vM}, v{vM}, v{vF + 7}")
    else:
        a(f"v_max_f32 v{vM}, v{vM}, v{vF + 3}")
    for i in range(NT * 4):
        a(f"v_fma_f32 v{vS + i}, v{vS + i}, s{sC}, -v{vM}")
    a(f"v_sub_f32 v{vT + 5}, v{vT + 5}, v{vM}")
    for i in range(NT * 4):
        a(f"v_exp_f32 v{vS + i}, v{vS + i}")
    a(f"v_exp_f32 v{vT + 5}, v{vT + 5}")
    a(f"v_add_f32 v{vT}, v{vS}, v{vS + 1}")
    a(f"v_add_f32 v{vT + 1}, v{vS + 2}, v{vS + 3}")
    for i in range(4, NT * 4, 2):
        a(f"v_add_f32 v{vT}, v{vT}, v{vS + i}")
        a(f"v_add_f32 v{vT + 1}, v{vT + 1}, v{vS + i + 1}")
    for i in range(NT * 2):
        a(f"v_cvt_pk_bf16_f32 v{vP + i}, v{vS + 2 * i}, v{vS + 2 * i + 1}")
    a(f"v_add_f32 v{vL}, v{vT}, v{vT + 1}")
    a(f"v_mov_b32 v{vT}, v{vL}")
    a("s_nop 1")
    a(f"v_permlane16_swap_b32 v{vL}, v{vT}")
    a("s_nop 1")
    a(f"v_add_f32 v{vL}, v{vL}, v{vT}")
    a(f"v_mov_b32 v{vT}, v{vL}")
    a("s_nop 1")
    a(f"v_permlane32_swap_b32 v{vL}, v{vT}")
    a("s_nop 1")
    a(f"v_add_f32 v{vL}, v{vL}, v{vT}")
    a(f"v_add_f32 v{vL}, v{vL}, v{vT + 5}")
    a(f"ds_write_b32 v{vT + 7}, v{vL} offset:512")
    a(f"s_cmp_eq_u32 s{sTree}, 0")
    a("s_cbranch_scc1 L_tree2")
    for i in range(32):
        a(f"v_mov_b32 v{vAcc + i}, 0")
    a("s_branch L_tree3")
    a.label("L_tree2")
    for t in range(8):
        a(f"v_lshlrev_b32 v{vAcc + 4 * t}, 16, v{vVt + 2 * t}")
        a(f"v_and_b32 v{vAcc + 4 * t + 1}, 0xffff0000, v{vVt + 2 * t}")
        a(f"v_lshlrev_b32 v{vAcc + 4 * t + 2}, 16, v{vVt + 2 * t + 1}")
        a(f"v_and_b32 v{vAcc + 4 * t + 3}, 0xffff0000, v{vVt + 2 * t + 1}")
    for i in range(32):
        a(f"v_mul_f32 v{vAcc + i}, v{vT + 5}, v{vAcc + i}")
    a.label("L_tree3")
    stamp()
    for t in range(NT):
        idx = NT + t
        slot = idx % NS
        h = t & 1
        a.wait_vm(("t", idx))
        fstamp(f"v{t}")
        last = t == NT - 1
        if P.compute:
            for d in range(8):
                a(f"ds_read_b64_tr_b16 {vr(vF + 4 * d + 2 * h, 2)}, v{vVr + d} offset:{slot * 4096}")
            if not last:
                a("s_waitcnt lgkmcnt(0)")
        if one and (nxt == len(tiles) - 1 or (t == 0 and nxt == len(tiles))):
            a(f"s_lshl_b32 s67, s{sGrp}, 2")
            a.vmem(f"buffer_load_dword v{vCnt}, off, s[44:47], s67 sc1", "cnt")
        if nxt < len(tiles):
            issue(nxt)
            nxt += 1
        if P.compute and h == 1:
            for d in range(8):
                if last:
                    a(f"s_waitcnt lgkmcnt({7 - d})")
                a(f"v_mfma_f32_16x16x32_bf16 {vr(vAcc + 4 * d, 4)}, {vr(vF + 4 * d, 4)}, {vr(vP + 4 * (t // 2), 4)}, {vr(vAcc + 4 * d, 4)}")
    if "cnt" in a.vq:
        a.wait_vm("cnt")
    stamp()
    a(f"v_mul_u32_u24 v{vT}, 528, v{vN}")
    a(f"v_lshl_add_u32 v{vT}, v{vG}, 4, v{vT}")
    a(f"v_add_u32 v{vT}, s{sLds}, v{vT}")
    a(f"v_lshrrev_b32 v{vT + 1}, 5, v{vTid}")
    a(f"v_mul_u32_u24 v{vT + 1}, 528, v{vT + 1}")
    a(f"v_and_b32 v{vT + 2}, 31, v{vTid}")
    a(f"v_lshl_add_u32 v{vT + 1}, v{vT + 2}, 4, v{vT + 1}")
    per = max(1, 65536 // RING)
    nreg = (W + per - 1) // per
    for r in range(1, nreg):
        a(f"v_add_u32 v{vT + 1 + r}, {r * per * RING}, v{vT + 1}")
    a("s_mov_b32 s56, 0x00ff00ff")
    a("s_mov_b32 s57, 0x00ff00ff")
    a("s_mov_b64 exec, s[56:57]")
    for d in range(8):
        a(f"ds_write_b128 v{vT}, {vr(vAcc + 4 * d, 4)} offset:{64 * d}")
    a("s_mov_b64 exec, -1")
    a("s_waitcnt lgkmcnt(0)")
    a("s_barrier")
    if W > 4:
        a(f"s_cmp_ge_u32 s{sW}, 4")
        a("s_cbranch_scc1 L_fin")
    for w in range(W):
        a(f"ds_read_b128 {vr(vF + 4 * w, 4)}, v{vT + 1 + w // per} offset:{(w % per) * RING}")
    a(f"ds_read_b128 {vr(vAcc, 4)}, v{vT + 6} offset:512")
    if W == 8:
        a(f"ds_read_b128 {vr(vAcc + 4, 4)}, v{vT + 6} offset:528")
    nl = 1 if W == 4 else 2
    a(f"s_waitcnt lgkmcnt({W - 2 + nl})")
    for w in range(1, W):
        if w > 1:
            a(f"s_waitcnt lgkmcnt({W - 1 - w + nl})")
        for c in range(4):
            a(f"v_add_f32 v{vF + c}, v{vF + c}, v{vF + 4 * w + c}")
    if one:
        for c in range(4):
            a(f"v_min_u32 v{vF + c}, -2, v{vF + c}")
    ppol = " sc1" if one else ""
    a(f"buffer_store_dwordx4 {vr(vF, 4)}, v{vPub}, s[36:39], s68 offen{ppol}")
    a(f"s_cmp_lg_u32 s{sW}, 0")
    a("s_cbranch_scc1 L_fin")
    a("s_waitcnt lgkmcnt(0)")
    a(f"v_add_f32 v{vAcc}, v{vAcc}, v{vAcc + 1}")
    a(f"v_add_f32 v{vAcc + 2}, v{vAcc + 2}, v{vAcc + 3}")
    if W == 8:
        a(f"v_add_f32 v{vAcc + 4}, v{vAcc + 4}, v{vAcc + 5}")
        a(f"v_add_f32 v{vAcc + 6}, v{vAcc + 6}, v{vAcc + 7}")
        a(f"v_add_f32 v{vAcc}, v{vAcc}, v{vAcc + 4}")
        a(f"v_add_f32 v{vAcc + 2}, v{vAcc + 2}, v{vAcc + 6}")
    a(f"v_add_f32 v{vAcc + 1}, v{vAcc}, v{vAcc + 2}")
    a(f"v_min_u32 v{vAcc}, -2, v{vM}")
    a(f"v_min_u32 v{vAcc + 1}, -2, v{vAcc + 1}")
    a(f"v_lshlrev_b32 v{vT}, 3, v{vLane}")
    a("s_mov_b64 exec, 0xff")
    a(f"buffer_store_dwordx2 {vr(vAcc, 2)}, v{vT}, s[36:39], s69 offen{ppol}")
    a("s_mov_b64 exec, -1")
    stamp()
    if one:
        a(f"v_cmp_gt_u32 vcc, 32, v{vCnt}")
        a("s_cbranch_vccz L_cntok")
        a("s_mov_b32 s59, 0")
        a(f"s_lshl_b32 s67, s{sGrp}, 2")
        a.label("L_cnt")
        a(f"buffer_load_dword v{vCnt}, off, s[44:47], s67 sc1")
        a("s_waitcnt vmcnt(0)")
        a(f"v_cmp_gt_u32 vcc, 32, v{vCnt}")
        a("s_add_u32 s59, s59, 1")
        a(f"s_cmp_lt_u32 s59, {P.spin}")
        a("s_cselect_b64 vcc, vcc, 0")
        a("s_nop 0")
        a("s_cbranch_vccnz L_cnt")
        a.label("L_cntok")
        emit_consumer(a, P, True, sGrp, sSp, vLane, vS)
    a.label("L_fin")
    if P.stamp:
        a("s_mov_b64 exec, -1")
        a("s_waitcnt vmcnt(0)")
        stamp()
        a(f"s_getreg_b32 s90, hwreg(HW_REG_XCC_ID)")
        a(f"s_getreg_b32 s91, hwreg(HW_REG_HW_ID)")
        a("s_waitcnt lgkmcnt(0)")
        for i in range(8):
            if i < len(stamps):
                a(f"v_mov_b32 v{vS + i}, s{stamps[i]}")
            else:
                a(f"v_mov_b32 v{vS + i}, 0")
        a(f"v_mov_b32 v{vS + 8}, s90")
        a(f"v_mov_b32 v{vS + 9}, s91")
        a(f"v_mov_b32 v{vS + 10}, s59")
        a(f"v_mov_b32 v{vS + 11}, s{stamps[0] + 1}")
        a(f"s_mul_i32 s56, s2, {W}")
        a(f"s_add_u32 s56, s56, s{sW}")
        a(f"s_lshl_b32 s56, s56, 6")
        a(f"s_add_u32 s56, s56, {WS_STAMP}")
        if P.stamp >= 2:
            a(f"s_sub_u32 s57, s56, {WS_STAMP}")
            a(f"s_lshl_b32 s57, s57, 2")
            a(f"s_add_u32 s57, s57, {WS_STAMP * 2}")
            a(f"v_lshlrev_b32 v{vT}, 2, v{vLane}")
            a(f"buffer_store_dword v{vFine}, v{vT}, s[36:39], s57 offen")
            a.comment("FINE " + " ".join(fine))
        a("s_mov_b64 exec, 1")
        for i in range(3):
            a(f"buffer_store_dwordx4 {vr(vS + 4 * i, 4)}, off, s[36:39], s56 offset:{16 * i}")
    a.label("L_end")
    a("s_endpgm")
    body = a.text()
    nv1 = a.nv
    out = HEADER
    if one:
        out += f"; @launch grid=(256,1,1) block=({64 * W},1,1) lds={LDS}\n"
    else:
        out += f"; @launch kernel=part_kernel grid=(256,1,1) block=({64 * W},1,1) lds={LDS}\n"
        out += f"; @launch kernel=comb_kernel grid=(256,1,1) block=(64,1,1) lds=0\n"
    out += '.amdgcn_target "amdgcn-amd-amdhsa--gfx950"\n.text\n' + body
    kds = kd(kname, nv1)
    if not one:
        b = Asm()
        b.lines.append(".globl comb_kernel\n.p2align 8\n.type comb_kernel,@function")
        b.label("comb_kernel")
        b("s_cmp_ge_u32 s2, 256")
        b("s_cbranch_scc1 L_end2")
        b("s_load_dwordx2 s[16:17], s[0:1], 48")
        b("s_load_dwordx2 s[20:21], s[0:1], 64")
        b("s_lshr_b32 s60, s2, 5")
        b("s_and_b32 s61, s2, 31")
        b("s_waitcnt lgkmcnt(0)")
        srd(b, 36, 20, 1 << 28)
        srd(b, 40, 16, 16384)
        emit_consumer(b, P, False, 60, 61, 0, 4)
        b.label("L_end2")
        b("s_endpgm")
        out += b.text()
        kds += kd("comb_kernel", 64)
    out += '.section .rodata,"a"\n' + kds
    return out


def main():
    ap = argparse.ArgumentParser()
    ap.add_argument("-W", type=int, default=4)
    ap.add_argument("--NS", type=int, default=8)
    ap.add_argument("--pol", default="nt")
    ap.add_argument("--outpol", default="")
    ap.add_argument("--map", default="lo")
    ap.add_argument("--order", default="contig")
    ap.add_argument("--mode", default="one")
    ap.add_argument("--stamp", type=int, default=0)
    ap.add_argument("--compute", type=int, default=1)
    ap.add_argument("--spin", type=int, default=200000)
    ap.add_argument("--null", type=int, default=0)
    ap.add_argument("-o", default="-")
    P = ap.parse_args()
    if P.outpol:
        P.outpol = " " + P.outpol
    s = gen(P)
    if P.o == "-":
        sys.stdout.write(s)
    else:
        open(P.o, "w").write(s)


if __name__ == "__main__":
    main()
```

```python
import sys, argparse, math

NAME = "standalone__tree_speculative_verify_tree_attention_over_candidate_token_tree__decode"

HEADER = """; Kernarg layout (72 bytes, ptrs only, base s[0:1]):
"""


class Asm:
    def __init__(self):
        self.lines = []
        self.vq = []
        self.nv = 0

    def __call__(self, s):
        self.lines.append("    " + s)

    def label(self, s):
        self.lines.append(s + ":")

    def comment(self, s):
        self.lines.append("    ; " + s)

    def vreg(self, n=1, align=1):
        self.nv = (self.nv + align - 1) // align * align
        r = self.nv
        self.nv += n
        return r

    def vmem(self, s, tag):
        self(s)
        self.vq.append(tag)

    def wait_vm(self, tag, extra=""):
        if tag not in self.vq:
            return
        idx = max(i for i, t in enumerate(self.vq) if t == tag)
        n = len(self.vq) - 1 - idx
        assert n <= 63, n
        self(f"s_waitcnt vmcnt({n}){extra}")
        self.vq = self.vq[idx + 1:]

    def text(self):
        return "\n".join(self.lines) + "\n"


def vr(b, n):
    return f"v[{b}:{b + n - 1}]" if n > 1 else f"v{b}"


def f32bits(x):
    import struct
    return struct.unpack("<I", struct.pack("<f", x))[0]


WS_O = 0
WS_ML = 1 << 20
WS_STAMP = 16 << 20


def emit_consumer(a, P, poll, sGrp, sJ, vLane, tmp, ml2=False):
    O = tmp
    ML = tmp + 16
    vA = tmp + 24
    vB = tmp + 25
    X = tmp + 26
    pol = " sc1" if poll else ""
    a(f"v_lshlrev_b32 v{vA}, 4, v{vLane}")
    a(f"v_lshrrev_b32 v{vB}, 3, v{vLane}")
    a(f"v_lshlrev_b32 v{vB}, {3 if ml2 else 7}, v{vB}")
    a(f"s_lshl_b32 s56, s{sGrp}, 17")
    a(f"s_lshl_b32 s57, s{sJ}, 12")
    a(f"s_add_u32 s56, s56, s57")
    if ml2:
        a(f"s_lshl_b32 s57, s{sGrp}, 13")
        a(f"s_lshl_b32 s58, s{sJ}, 8")
    else:
        a(f"s_lshl_b32 s57, s{sGrp}, 12")
        a(f"s_lshr_b32 s58, s{sJ}, 2")
        a(f"s_lshl_b32 s58, s58, 3")
    a(f"s_add_u32 s57, s57, s58")
    a(f"s_add_u32 s57, s57, {WS_ML}")
    if poll:
        a("s_mov_b32 s59, 0")
        a.label("L_poll")
    for i in range(4):
        a(f"buffer_load_dwordx4 {vr(O + 4 * i, 4)}, v{vA}, s[36:39], s56 offen offset:{1024 * i}{pol}")
    for i in range(4):
        a(f"buffer_load_dwordx2 {vr(ML + 2 * i, 2)}, v{vB}, s[36:39], s57 offen offset:{(64 if ml2 else 1024) * i}{pol}")
    a("s_waitcnt vmcnt(0)")
    if poll:
        a(f"v_max3_u32 v{X}, v{O}, v{O + 1}, v{O + 2}")
        a(f"v_max3_u32 v{X + 1}, v{O + 3}, v{O + 4}, v{O + 5}")
        regs = list(range(O + 6, O + 24))
        k = 0
        while regs:
            a(f"v_max3_u32 v{X + k}, v{X + k}, v{regs[0]}, v{regs[1]}")
            regs = regs[2:]
            k ^= 1
        a(f"v_max_u32 v{X}, v{X}, v{X + 1}")
        a(f"v_cmp_eq_u32 vcc, -1, v{X}")
        a("s_add_u32 s59, s59, 1")
        a(f"s_cmp_lt_u32 s59, {P.spin}")
        a("s_cselect_b64 vcc, vcc, 0")
        a("s_nop 0")
        a("s_cbranch_vccnz L_poll")
    M = X
    T = X + 1
    a(f"v_max3_f32 v{M}, v{ML}, v{ML + 2}, v{ML + 4}")
    a(f"v_max_f32 v{M}, v{M}, v{ML + 6}")
    a("s_nop 1")
    a(f"v_max_f32_dpp v{M}, v{M}, v{M} row_ror:8 row_mask:0xf bank_mask:0xf")
    a(f"v_mov_b32 v{T}, v{M}")
    a("s_nop 1")
    a(f"v_permlane16_swap_b32 v{M}, v{T}")
    a("s_nop 1")
    a(f"v_max_f32 v{M}, v{M}, v{T}")
    a(f"v_mov_b32 v{T}, v{M}")
    a("s_nop 1")
    a(f"v_permlane32_swap_b32 v{M}, v{T}")
    a("s_nop 1")
    a(f"v_max_f32 v{M}, v{M}, v{T}")
    Wt = X + 2
    for i in range(4):
        a(f"v_sub_f32 v{Wt + i}, v{ML + 2 * i}, v{M}")
    for i in range(4):
        a(f"v_exp_f32 v{Wt + i}, v{Wt + i}")
    R = X + 6
    a("s_nop 0")
    for c in range(4):
        a(f"v_mul_f32 v{R + c}, v{Wt}, v{O + c}")
    a(f"v_mul_f32 v{R + 4}, v{Wt}, v{ML + 1}")
    for i in range(1, 4):
        for c in range(4):
            a(f"v_fmac_f32 v{R + c}, v{Wt + i}, v{O + 4 * i + c}")
        a(f"v_fmac_f32 v{R + 4}, v{Wt + i}, v{ML + 2 * i + 1}")
    a("s_nop 1")
    for c in range(5):
        a(f"v_add_f32_dpp v{R + c}, v{R + c}, v{R + c} row_ror:8 row_mask:0xf bank_mask:0xf")
    C = O
    for c in range(5):
        a(f"v_mov_b32 v{C + c}, v{R + c}")
    a("s_nop 1")
    for c in range(5):
        a(f"v_permlane16_swap_b32 v{R + c}, v{C + c}")
    a("s_nop 1")
    for c in range(5):
        a(f"v_add_f32 v{R + c}, v{R + c}, v{C + c}")
    for c in range(5):
        a(f"v_mov_b32 v{C + c}, v{R + c}")
    a("s_nop 1")
    for c in range(5):
        a(f"v_permlane32_swap_b32 v{R + c}, v{C + c}")
    a("s_nop 1")
    for c in range(5):
        a(f"v_add_f32 v{R + c}, v{R + c}, v{C + c}")
    a(f"v_rcp_f32 v{R + 4}, v{R + 4}")
    a(f"s_lshl_b32 s56, s{sGrp}, 11")
    a(f"s_lshl_b32 s57, s{sJ}, 6")
    a(f"s_add_u32 s56, s56, s57")
    a(f"v_lshlrev_b32 v{vA}, 3, v{vLane}")
    for c in range(4):
        a(f"v_mul_f32 v{R + c}, v{R + c}, v{R + 4}")
    a(f"v_cvt_pk_bf16_f32 v{C}, v{R}, v{R + 1}")
    a(f"v_cvt_pk_bf16_f32 v{C + 1}, v{R + 2}, v{R + 3}")
    a("s_mov_b64 exec, 0xff")
    a(f"buffer_store_dwordx2 {vr(C, 2)}, v{vA}, s[40:43], s56 offen{P.outpol}")


def srd(a, d, b, size):
    a(f"s_mov_b32 s{d}, s{b}")
    a(f"s_and_b32 s{d + 1}, s{b + 1}, 0xffff")
    a(f"s_mov_b32 s{d + 2}, {size}")
    a(f"s_mov_b32 s{d + 3}, 0x00020000")


def kd(name, nv, ns=96):
    nv = (nv + 7) // 8 * 8
    return f""".p2align 6
.amdhsa_kernel {name}
  .amdhsa_next_free_vgpr {nv}
  .amdhsa_next_free_sgpr {ns}
  .amdhsa_accum_offset {min(nv, 256)}
  .amdhsa_group_segment_fixed_size 0
  .amdhsa_kernarg_size 72
  .amdhsa_user_sgpr_count 2
  .amdhsa_user_sgpr_kernarg_segment_ptr 1
  .amdhsa_system_sgpr_workgroup_id_x 1
  .amdhsa_float_denorm_mode_32 3
.end_amdhsa_kernel
"""


def gen(P):
    W, NS = P.W, P.NS
    KW = 1024 // W
    NT = KW // 16
    RING = NS * 4096
    SCR = W * RING
    LDS = SCR + 1024
    one = P.mode == "one"
    pol = (" " + P.pol) if P.pol else ""
    CSC = (128 ** -0.5) * math.log2(math.e)

    a = Asm()
    kname = NAME + "_kernel" if one else "part_kernel"
    a.lines.append(f".globl {kname}\n.p2align 8\n.type {kname},@function")
    a.label(kname)
    vTid = a.vreg()
    vLane = a.vreg()
    vG = a.vreg()
    vN = a.vreg()
    vT = a.vreg(8, 4)
    vKs = a.vreg(4)
    vVs = a.vreg(2)
    vKr = a.vreg(4)
    vVr = a.vreg(8)
    vPub = a.vreg()
    vM = a.vreg()
    vL = a.vreg()
    vCnt = a.vreg()
    vQ = a.vreg(16, 4)
    vKt = a.vreg(16, 4)
    vVt = a.vreg(16, 4)
    vF = a.vreg(32, 4)
    vAcc = a.vreg(32, 4)
    vS = a.vreg(NT * 4, 4)
    vP = a.vreg(NT * 2, 4)
    vSt = a.vreg(4, 4)
    sW, sLds, sGrp, sSp, sBase, sOff = 22, 23, 60, 61, 62, 63
    sTree, sMask, sC = 64, 65, 66
    stamps = []

    vFine = a.vreg()
    fine = []

    def stamp():
        if P.stamp:
            r = 70 + 2 * len(stamps)
            stamps.append(r)
            a(f"s_memrealtime s[{r}:{r + 1}]")

    def fstamp(name):
        if P.stamp >= 2:
            a("s_memrealtime s[92:93]")
            a("s_waitcnt lgkmcnt(0)")
            a(f"v_writelane_b32 v{vFine}, s92, {len(fine)}")
            fine.append(name)

    if P.null:
        a("s_endpgm")
    a("s_cmp_ge_u32 s2, 256")
    a("s_cbranch_scc1 L_end")
    a("s_load_dwordx16 s[4:19], s[0:1], 0")
    a("s_load_dwordx2 s[20:21], s[0:1], 64")
    stamp()
    a(f"v_lshrrev_b32 v{vT}, 6, v0")
    a(f"v_and_b32 v{vLane}, 63, v0")
    a(f"v_readfirstlane_b32 s{sW}, v{vT}")
    a(f"v_lshrrev_b32 v{vG}, 4, v{vLane}")
    a(f"v_and_b32 v{vN}, 15, v0")
    if P.map == "lo":
        a(f"s_and_b32 s{sGrp}, s2, 7")
        a(f"s_lshr_b32 s{sSp}, s2, 3")
    elif P.map == "hi":
        a(f"s_lshr_b32 s{sGrp}, s2, 5")
        a(f"s_and_b32 s{sSp}, s2, 31")
    else:
        a(f"s_lshr_b32 s{sGrp}, s2, 5")
        a(f"s_and_b32 s{sSp}, s2, 7")
        a(f"s_lshl_b32 s{sSp}, s{sSp}, 2")
        a(f"s_bfe_u32 s67, s2, 0x20003")
        a(f"s_or_b32 s{sSp}, s{sSp}, s67")
    a(f"v_lshlrev_b32 v{vT + 1}, 8, v{vG}")
    a(f"v_xor_b32 v{vT + 2}, v{vN}, v{vG}")
    for i in range(4):
        if i:
            a(f"v_xor_b32 v{vT + 3}, {4 * i}, v{vT + 2}")
            a(f"v_lshl_add_u32 v{vKs + i}, v{vT + 3}, 4, v{vT + 1}")
        else:
            a(f"v_lshl_add_u32 v{vKs + i}, v{vT + 2}, 4, v{vT + 1}")
    a(f"v_and_b32 v{vT + 4}, 7, v{vN}")
    a(f"v_lshlrev_b32 v{vT + 4}, 8, v{vT + 4}")
    a(f"v_lshl_add_u32 v{vT + 4}, v{vG}, 4, v{vT + 4}")
    a(f"s_mul_i32 s{sLds}, s{sW}, {RING}")
    a(f"s_lshl_b32 s{sBase}, s{sGrp}, 23")
    sAs = 89
    a(f"s_mul_i32 s{sAs}, s{sGrp}, {P.rot}")
    a(f"s_add_u32 s{sAs}, s{sAs}, s{sSp}")
    a(f"s_and_b32 s{sAs}, s{sAs}, 31")
    a(f"s_mul_i32 s88, s{sGrp}, {P.trot}")
    if P.srot:
        a(f"s_mul_i32 s87, s{sAs}, {P.srot}")
        a(f"s_add_u32 s88, s88, s87")
    if P.order == "contig":
        stride = 4096
        a(f"s_lshl_b32 s{sOff}, s{sAs}, 18")
        a(f"s_add_u32 s{sBase}, s{sBase}, s{sOff}")
        a(f"s_mul_i32 s{sOff}, s{sW}, {KW * 256}")
        a(f"s_add_u32 s{sBase}, s{sBase}, s{sOff}")
    elif P.order == "wgil":
        stride = 4096 * W
        a(f"s_lshl_b32 s{sOff}, s{sAs}, 18")
        a(f"s_add_u32 s{sBase}, s{sBase}, s{sOff}")
        a(f"s_lshl_b32 s{sOff}, s{sW}, 12")
        a(f"s_add_u32 s{sBase}, s{sBase}, s{sOff}")
    else:
        stride = 4096 * W * 32
        a(f"s_mul_i32 s{sOff}, s{sAs}, {W}")
        a(f"s_add_u32 s{sOff}, s{sOff}, s{sW}")
        a(f"s_lshl_b32 s{sOff}, s{sOff}, 12")
        a(f"s_add_u32 s{sBase}, s{sBase}, s{sOff}")
    a(f"s_lshl_b32 s67, s{sGrp}, 11")
    a("s_waitcnt lgkmcnt(0)")
    fstamp("karg")
    srd(a, 32, 4, 16384)
    srd(a, 24, 6, 1 << 26)
    for j in range(4):
        a.vmem(f"buffer_load_dwordx4 {vr(vQ + 4 * j, 4)}, v{vT + 4}, s[32:35], s67 offen offset:{64 * j}", "q")
    srd(a, 28, 8, 1 << 26)

    tiles = [("k", t) for t in range(NT)] + [("v", t) for t in range(NT)]
    if P.kvmix:
        assert not P.compute
        tiles = []
        for t0 in range(0, NT, P.kvmix):
            tiles += [("k", t) for t in range(t0, t0 + P.kvmix)] + [("v", t) for t in range(t0, t0 + P.kvmix)]

    def issue(idx):
        kind, t = tiles[idx]
        slot = idx % NS
        a(f"s_add_u32 m0, s{sLds}, {slot * 4096}")
        if P.trot or P.srot:
            a(f"s_add_u32 s{sOff}, s88, {t}")
            a(f"s_and_b32 s{sOff}, s{sOff}, {NT - 1}")
            a(f"s_mul_i32 s{sOff}, s{sOff}, {stride}")
            a(f"s_add_u32 s{sOff}, s{sOff}, s{sBase}")
        else:
            a(f"s_add_u32 s{sOff}, s{sBase}, {t * stride}")
        for i in range(4):
            if kind == "k":
                a.vmem(f"buffer_load_dwordx4 v{vKs + i}, s[24:27], s{sOff} offen offset:{1024 * i}{pol} lds", ("t", idx))
            else:
                a.vmem(f"buffer_load_dwordx4 v{vVs + (i & 1)}, s[28:31], s{sOff} offen offset:{1024 * i}{pol} lds", ("t", idx))

    def vsrc():
        a(f"v_lshlrev_b32 v{vT + 2}, 1, v{vG}")
        a(f"v_xor_b32 v{vT + 2}, v{vT + 2}, v{vN}")
        a(f"v_lshl_add_u32 v{vVs}, v{vT + 2}, 4, v{vT + 1}")
        a(f"v_xor_b32 v{vT + 2}, 8, v{vT + 2}")
        a(f"v_lshl_add_u32 v{vVs + 1}, v{vT + 2}, 4, v{vT + 1}")

    if NS > NT or P.kvmix:
        vsrc()
    for idx in range(min(NS, len(tiles))):
        issue(idx)
    fstamp("issued")
    if NS <= NT and not P.kvmix:
        vsrc()
    srd(a, 36, 20, 1 << 28)
    srd(a, 40, 16, 16384)
    srd(a, 44, 18, 256)
    srd(a, 48, 10, 2048)
    srd(a, 52, 12, 2048)
    a("s_load_dword s65, s[14:15], 0")
    a(f"s_lshl_b32 s67, s{sGrp}, 8")
    a(f"v_lshlrev_b32 v{vT + 4}, 4, v{vG}")
    a(f"v_lshlrev_b32 v{vT + 5}, 3, v{vG}")
    for j in range(0 if P.notree else 4):
        a.vmem(f"buffer_load_dwordx4 {vr(vKt + 4 * j, 4)}, v{vT + 4}, s[48:51], s67 offen offset:{64 * j}", "kt")
    for t in range(0 if P.notree else 8):
        a.vmem(f"buffer_load_dwordx2 {vr(vVt + 2 * t, 2)}, v{vT + 5}, s[52:55], s67 offen offset:{32 * t}", "vt")
    a(f"v_lshrrev_b32 v{vT + 6}, 3, v{vTid}")
    a(f"v_lshlrev_b32 v{vT + 6}, 12, v{vT + 6}")
    a(f"v_and_b32 v{vT + 7}, 7, v{vTid}")
    a(f"v_lshl_add_u32 v{vPub}, v{vT + 7}, 4, v{vT + 6}")
    a(f"s_lshl_b32 s68, s{sGrp}, 17")
    a(f"s_lshl_b32 s69, s{sSp}, 7")
    a(f"s_add_u32 s68, s68, s69")
    a(f"s_lshl_b32 s67, s{sGrp}, 12")
    a(f"s_add_u32 s69, s69, s67")
    a(f"s_add_u32 s69, s69, {WS_ML}")
    if one:
        for c in range(4):
            a(f"v_mov_b32 v{vSt + c}, -1")
        if W > 4:
            a(f"v_cmp_gt_u32 vcc, 256, v{vTid}")
            a(f"v_mov_b32 v{vT + 6}, 0x20000000")
            a("s_nop 0")
            a(f"v_cndmask_b32 v{vPub}, v{vT + 6}, v{vPub}, vcc")
        a.vmem(f"buffer_store_dwordx4 {vr(vSt, 4)}, v{vPub}, s[36:39], s68 offen sc1", "clr")
        a(f"v_cmp_gt_u32 vcc, 8, v{vTid}")
        a(f"v_mov_b32 v{vT + 6}, 0x20000000")
        a(f"v_lshlrev_b32 v{vT + 7}, 3, v{vTid}")
        a(f"v_cndmask_b32 v{vT + 6}, v{vT + 6}, v{vT + 7}, vcc")
        a.vmem(f"buffer_store_dwordx2 {vr(vSt, 2)}, v{vT + 6}, s[36:39], s69 offen sc1", "clr")
    for j in range(4):
        a(f"v_or_b32 v{vT + 2}, {4 * j}, v{vG}")
        a(f"v_xor_b32 v{vT + 2}, v{vT + 2}, v{vN}")
        a(f"v_lshlrev_b32 v{vT + 2}, 4, v{vT + 2}")
        a(f"v_lshl_add_u32 v{vT + 2}, v{vN}, 8, v{vT + 2}")
        a(f"v_add_u32 v{vKr + j}, s{sLds}, v{vT + 2}")
    a(f"v_lshrrev_b32 v{vT + 2}, 2, v{vN}")
    a(f"v_lshl_add_u32 v{vT + 2}, v{vG}, 2, v{vT + 2}")
    a(f"v_and_b32 v{vT + 3}, 3, v{vN}")
    a(f"v_lshlrev_b32 v{vT + 3}, 3, v{vT + 3}")
    a(f"v_lshl_add_u32 v{vT + 3}, v{vT + 2}, 8, v{vT + 3}")
    a(f"v_add_u32 v{vT + 3}, s{sLds}, v{vT + 3}")
    a(f"v_and_b32 v{vT + 2}, 7, v{vT + 2}")
    for t in range(8):
        a(f"v_xor_b32 v{vT + 4}, {t}, v{vT + 2}")
        a(f"v_lshl_add_u32 v{vVr + t}, v{vT + 4}, 5, v{vT + 3}")
    a(f"s_mov_b32 s{sC}, {f32bits(CSC)}")
    a(f"s_or_b32 s{sTree}, s{sSp}, s{sW}")

    nxt = min(NS, len(tiles))
    for t in range(NT):
        idx = t
        slot = idx % NS
        if t == 0 and P.stamp >= 2:
            fstamp("pre")
            a.wait_vm("q")
            fstamp("q")
        a.wait_vm(("t", idx))
        fstamp(f"k{t}")
        if t == 0:
            stamp()
        if P.compute:
            for j in range(4):
                a(f"ds_read_b128 {vr(vF + 4 * j, 4)}, v{vKr + j} offset:{slot * 4096}")
            a("s_waitcnt lgkmcnt(0)")
        if nxt < len(tiles):
            issue(nxt)
            nxt += 1
        if P.compute:
            for j in range(4):
                c = "0" if j == 0 else vr(vS + 4 * t, 4)
                a(f"v_mfma_f32_16x16x32_bf16 {vr(vS + 4 * t, 4)}, {vr(vF + 4 * j, 4)}, {vr(vQ + 4 * j, 4)}, {c}")
    def softmax_block():
        if "kt" in a.vq:
            a.wait_vm("vt")
        if one and "clr" in a.vq:
            a.wait_vm("clr")
        for j in range(4):
            c = "0" if j == 0 else vr(vSt, 4)
            a(f"v_mfma_f32_16x16x32_bf16 {vr(vSt, 4)}, {vr(vKt + 4 * j, 4)}, {vr(vQ + 4 * j, 4)}, {c}")
        a("s_waitcnt lgkmcnt(0)")
        a(f"s_lshr_b32 s67, s{sGrp}, 2")
        a(f"s_lshl_b32 s67, s67, 4")
        a(f"s_lshr_b32 s{sMask}, s{sMask}, s67")
        a(f"s_lshl_b32 s{sMask}, s{sMask}, 16")
        a(f"v_mov_b32 v{vT + 5}, s{sMask}")
        a(f"v_sub_f32 v{vT + 5}, 1.0, v{vT + 5}")
        a(f"v_mul_f32 v{vT + 5}, {f32bits(-1e9 * math.log2(math.e))}, v{vT + 5}")
        a("s_nop 4")
        regs = [vS + i for i in range(NT * 4)]
        a(f"v_max3_f32 v{vT}, v{regs[0]}, v{regs[1]}, v{regs[2]}")
        a(f"v_max3_f32 v{vT + 1}, v{regs[3]}, v{regs[4]}, v{regs[5]}")
        regs = regs[6:]
        k = 0
        while regs:
            a(f"v_max3_f32 v{vT + k}, v{vT + k}, v{regs[0]}, v{regs[1]}")
            regs = regs[2:]
            k ^= 1
        a(f"v_max_f32 v{vM}, v{vT}, v{vT + 1}")
        a(f"v_mul_f32 v{vM}, s{sC}, v{vM}")
        a(f"v_fma_f32 v{vT + 5}, v{vSt}, s{sC}, v{vT + 5}")
        a(f"s_cmp_eq_u32 s{sTree}, 0")
        a("s_cbranch_scc1 L_tree1")
        a(f"v_mov_b32 v{vT + 5}, 0xff800000")
        a.label("L_tree1")
        a(f"v_max_f32 v{vM}, v{vM}, v{vT + 5}")
        a(f"v_mov_b32 v{vT}, v{vM}")
        a("s_nop 1")
        a(f"v_permlane16_swap_b32 v{vM}, v{vT}")
        a("s_nop 1")
        a(f"v_max_f32 v{vM}, v{vM}, v{vT}")
        a(f"v_mov_b32 v{vT}, v{vM}")
        a("s_nop 1")
        a(f"v_permlane32_swap_b32 v{vM}, v{vT}")
        a("s_nop 1")
        a(f"v_max_f32 v{vM}, v{vM}, v{vT}")
        a(f"s_lshl_b32 s67, s{sW}, 2")
        a(f"v_lshlrev_b32 v{vT + 6}, {2 + int(math.log2(W))}, v{vN}")
        a(f"v_add_u32 v{vT + 6}, {SCR}, v{vT + 6}")
        a(f"v_add_u32 v{vT + 7}, s67, v{vT + 6}")
        a(f"ds_write_b32 v{vT + 7}, v{vM}")
        a("s_waitcnt lgkmcnt(0)")
        a("s_barrier")
        a(f"ds_read_b128 {vr(vF, 4)}, v{vT + 6}")
        if W == 8:
            a(f"ds_read_b128 {vr(vF + 4, 4)}, v{vT + 6} offset:16")
        if one:
            a(f"s_cmp_lg_u32 s{sW}, 0")
            a("s_cbranch_scc1 L_nosig")
            a(f"v_mov_b32 v{vT}, 1")
            a(f"s_lshl_b32 s67, s{sGrp}, 2")
            a("s_mov_b64 exec, 1")
            a(f"buffer_atomic_add v{vT}, off, s[44:47], s67")
            a("s_mov_b64 exec, -1")
            a.label("L_nosig")
        a("s_waitcnt lgkmcnt(0)")
        a(f"v_max3_f32 v{vM}, v{vF}, v{vF + 1}, v{vF + 2}")
        if W == 8:
            a(f"v_max3_f32 v{vM}, v{vM}, v{vF + 3}, v{vF + 4}")
            a(f"v_max3_f32 v{vM}, v{vM}, v{vF + 5}, v{vF + 6}")
            a(f"v_max_f32 v{vM}, v{vM}, v{vF + 7}")
        else:
            a(f"v_max_f32 v{vM}, v{vM}, v{vF + 3}")
        for i in range(NT * 4):
            a(f"v_fma_f32 v{vS + i}, v{vS + i}, s{sC}, -v{vM}")
        a(f"v_sub_f32 v{vT + 5}, v{vT + 5}, v{vM}")
        for i in range(NT * 4):
            a(f"v_exp_f32 v{vS + i}, v{vS + i}")
        a(f"v_exp_f32 v{vT + 5}, v{vT + 5}")
        a(f"v_add_f32 v{vT}, v{vS}, v{vS + 1}")
        a(f"v_add_f32 v{vT + 1}, v{vS + 2}, v{vS + 3}")
        for i in range(4, NT * 4, 2):
            a(f"v_add_f32 v{vT}, v{vT}, v{vS + i}")
            a(f"v_add_f32 v{vT + 1}, v{vT + 1}, v{vS + i + 1}")
        for i in range(NT * 2):
            a(f"v_cvt_pk_bf16_f32 v{vP + i}, v{vS + 2 * i}, v{vS + 2 * i + 1}")
        a(f"v_add_f32 v{vL}, v{vT}, v{vT + 1}")
        a(f"v_mov_b32 v{vT}, v{vL}")
        a("s_nop 1")
        a(f"v_permlane16_swap_b32 v{vL}, v{vT}")
        a("s_nop 1")
        a(f"v_add_f32 v{vL}, v{vL}, v{vT}")
        a(f"v_mov_b32 v{vT}, v{vL}")
        a("s_nop 1")
        a(f"v_permlane32_swap_b32 v{vL}, v{vT}")
        a("s_nop 1")
        a(f"v_add_f32 v{vL}, v{vL}, v{vT}")
        a(f"v_add_f32 v{vL}, v{vL}, v{vT + 5}")
        a(f"ds_write_b32 v{vT + 7}, v{vL} offset:512")
        a(f"s_cmp_eq_u32 s{sTree}, 0")
        a("s_cbranch_scc1 L_tree2")
        for i in range(32):
            a(f"v_mov_b32 v{vAcc + i}, 0")
        a("s_branch L_tree3")
        a.label("L_tree2")
        for t in range(8):
            a(f"v_lshlrev_b32 v{vAcc + 4 * t}, 16, v{vVt + 2 * t}")
            a(f"v_and_b32 v{vAcc + 4 * t + 1}, 0xffff0000, v{vVt + 2 * t}")
            a(f"v_lshlrev_b32 v{vAcc + 4 * t + 2}, 16, v{vVt + 2 * t + 1}")
            a(f"v_and_b32 v{vAcc + 4 * t + 3}, 0xffff0000, v{vVt + 2 * t + 1}")
        for i in range(32):
            a(f"v_mul_f32 v{vAcc + i}, v{vT + 5}, v{vAcc + i}")
        a.label("L_tree3")


    stamp()
    if P.compute:
        softmax_block()
    stamp()
    for t in range(NT):
        idx = NT + t
        slot = idx % NS
        h = t & 1
        a.wait_vm(("t", idx))
        fstamp(f"v{t}")
        last = t == NT - 1
        if P.compute:
            for d in range(8):
                a(f"ds_read_b64_tr_b16 {vr(vF + 4 * d + 2 * h, 2)}, v{vVr + d} offset:{slot * 4096}")
            if not last:
                a("s_waitcnt lgkmcnt(0)")
        if one and (nxt == len(tiles) - 1 or (t == 0 and nxt == len(tiles))):
            a(f"s_lshl_b32 s67, s{sGrp}, 2")
            a.vmem(f"buffer_load_dword v{vCnt}, off, s[44:47], s67 sc1", "cnt")
        if nxt < len(tiles):
            issue(nxt)
            nxt += 1
        if P.compute and h == 1:
            for d in range(8):
                if last:
                    a(f"s_waitcnt lgkmcnt({7 - d})")
                a(f"v_mfma_f32_16x16x32_bf16 {vr(vAcc + 4 * d, 4)}, {vr(vF + 4 * d, 4)}, {vr(vP + 4 * (t // 2), 4)}, {vr(vAcc + 4 * d, 4)}")
    if "cnt" in a.vq:
        a.wait_vm("cnt")
    stamp()
    a(f"v_mul_u32_u24 v{vT}, 528, v{vN}")
    a(f"v_lshl_add_u32 v{vT}, v{vG}, 4, v{vT}")
    a(f"v_add_u32 v{vT}, s{sLds}, v{vT}")
    a(f"v_lshrrev_b32 v{vT + 1}, 5, v{vTid}")
    a(f"v_mul_u32_u24 v{vT + 1}, 528, v{vT + 1}")
    a(f"v_and_b32 v{vT + 2}, 31, v{vTid}")
    a(f"v_lshl_add_u32 v{vT + 1}, v{vT + 2}, 4, v{vT + 1}")
    per = max(1, 65536 // RING)
    nreg = (W + per - 1) // per
    for r in range(1, nreg):
        a(f"v_add_u32 v{vT + 1 + r}, {r * per * RING}, v{vT + 1}")
    a("s_mov_b32 s56, 0x00ff00ff")
    a("s_mov_b32 s57, 0x00ff00ff")
    a("s_mov_b64 exec, s[56:57]")
    for d in range(8):
        a(f"ds_write_b128 v{vT}, {vr(vAcc + 4 * d, 4)} offset:{64 * d}")
    a("s_mov_b64 exec, -1")
    a("s_waitcnt lgkmcnt(0)")
    a("s_barrier")
    if W > 4:
        a(f"s_cmp_ge_u32 s{sW}, 4")
        a("s_cbranch_scc1 L_fin")
    for w in range(W):
        a(f"ds_read_b128 {vr(vF + 4 * w, 4)}, v{vT + 1 + w // per} offset:{(w % per) * RING}")
    a(f"ds_read_b128 {vr(vAcc, 4)}, v{vT + 6} offset:512")
    if W == 8:
        a(f"ds_read_b128 {vr(vAcc + 4, 4)}, v{vT + 6} offset:528")
    nl = 1 if W == 4 else 2
    a(f"s_waitcnt lgkmcnt({W - 2 + nl})")
    for w in range(1, W):
        if w > 1:
            a(f"s_waitcnt lgkmcnt({W - 1 - w + nl})")
        for c in range(4):
            a(f"v_add_f32 v{vF + c}, v{vF + c}, v{vF + 4 * w + c}")
    if one:
        for c in range(4):
            a(f"v_min_u32 v{vF + c}, -2, v{vF + c}")
    ppol = " sc1" if one else ""
    a(f"buffer_store_dwordx4 {vr(vF, 4)}, v{vPub}, s[36:39], s68 offen{ppol}")
    a(f"s_cmp_lg_u32 s{sW}, 0")
    a("s_cbranch_scc1 L_fin")
    a("s_waitcnt lgkmcnt(0)")
    a(f"v_add_f32 v{vAcc}, v{vAcc}, v{vAcc + 1}")
    a(f"v_add_f32 v{vAcc + 2}, v{vAcc + 2}, v{vAcc + 3}")
    if W == 8:
        a(f"v_add_f32 v{vAcc + 4}, v{vAcc + 4}, v{vAcc + 5}")
        a(f"v_add_f32 v{vAcc + 6}, v{vAcc + 6}, v{vAcc + 7}")
        a(f"v_add_f32 v{vAcc}, v{vAcc}, v{vAcc + 4}")
        a(f"v_add_f32 v{vAcc + 2}, v{vAcc + 2}, v{vAcc + 6}")
    a(f"v_add_f32 v{vAcc + 1}, v{vAcc}, v{vAcc + 2}")
    a(f"v_min_u32 v{vAcc}, -2, v{vM}")
    a(f"v_min_u32 v{vAcc + 1}, -2, v{vAcc + 1}")
    a(f"v_lshlrev_b32 v{vT}, 3, v{vLane}")
    a("s_mov_b64 exec, 0xff")
    a(f"buffer_store_dwordx2 {vr(vAcc, 2)}, v{vT}, s[36:39], s69 offen{ppol}")
    a("s_mov_b64 exec, -1")
    stamp()
    if one:
        a(f"v_cmp_gt_u32 vcc, 32, v{vCnt}")
        a("s_cbranch_vccz L_cntok")
        a("s_mov_b32 s59, 0")
        a(f"s_lshl_b32 s67, s{sGrp}, 2")
        a.label("L_cnt")
        a(f"buffer_load_dword v{vCnt}, off, s[44:47], s67 sc1")
        a("s_waitcnt vmcnt(0)")
        a(f"v_cmp_gt_u32 vcc, 32, v{vCnt}")
        a("s_add_u32 s59, s59, 1")
        a(f"s_cmp_lt_u32 s59, {P.spin}")
        a("s_cselect_b64 vcc, vcc, 0")
        a("s_nop 0")
        a("s_cbranch_vccnz L_cnt")
        a.label("L_cntok")
        emit_consumer(a, P, True, sGrp, sSp, vLane, vS)
    a.label("L_fin")
    if P.stamp:
        a("s_mov_b64 exec, -1")
        a("s_waitcnt vmcnt(0)")
        stamp()
        a(f"s_getreg_b32 s90, hwreg(HW_REG_XCC_ID)")
        a(f"s_getreg_b32 s91, hwreg(HW_REG_HW_ID)")
        a("s_waitcnt lgkmcnt(0)")
        for i in range(8):
            if i < len(stamps):
                a(f"v_mov_b32 v{vS + i}, s{stamps[i]}")
            else:
                a(f"v_mov_b32 v{vS + i}, 0")
        a(f"v_mov_b32 v{vS + 8}, s90")
        a(f"v_mov_b32 v{vS + 9}, s91")
        a(f"v_mov_b32 v{vS + 10}, s59")
        a(f"v_mov_b32 v{vS + 11}, s{stamps[0] + 1}")
        a(f"s_mul_i32 s56, s2, {W}")
        a(f"s_add_u32 s56, s56, s{sW}")
        a(f"s_lshl_b32 s56, s56, 6")
        a(f"s_add_u32 s56, s56, {WS_STAMP}")
        if P.stamp >= 2:
            a(f"s_sub_u32 s57, s56, {WS_STAMP}")
            a(f"s_lshl_b32 s57, s57, 2")
            a(f"s_add_u32 s57, s57, {WS_STAMP * 2}")
            a(f"v_lshlrev_b32 v{vT}, 2, v{vLane}")
            a(f"buffer_store_dword v{vFine}, v{vT}, s[36:39], s57 offen")
            a.comment("FINE " + " ".join(fine))
        a("s_mov_b64 exec, 1")
        for i in range(3):
            a(f"buffer_store_dwordx4 {vr(vS + 4 * i, 4)}, off, s[36:39], s56 offset:{16 * i}")
    a.label("L_end")
    a("s_endpgm")
    body = a.text()
    nv1 = a.nv
    out = HEADER
    if one:
        out += f"; @launch grid=(256,1,1) block=({64 * W},1,1) lds={LDS}\n"
    else:
        out += f"; @launch kernel=part_kernel grid=(256,1,1) block=({64 * W},1,1) lds={LDS}\n"
        out += f"; @launch kernel=comb_kernel grid=(256,1,1) block=(64,1,1) lds=0\n"
    out += '.amdgcn_target "amdgcn-amd-amdhsa--gfx950"\n.text\n' + body
    kds = kd(kname, nv1)
    if not one:
        b = Asm()
        b.lines.append(".globl comb_kernel\n.p2align 8\n.type comb_kernel,@function")
        b.label("comb_kernel")
        b("s_cmp_ge_u32 s2, 256")
        b("s_cbranch_scc1 L_end2")
        b("s_load_dwordx2 s[16:17], s[0:1], 48")
        b("s_load_dwordx2 s[20:21], s[0:1], 64")
        b("s_lshr_b32 s60, s2, 5")
        b("s_and_b32 s61, s2, 31")
        b("s_waitcnt lgkmcnt(0)")
        srd(b, 36, 20, 1 << 28)
        srd(b, 40, 16, 16384)
        emit_consumer(b, P, False, 60, 61, 0, 4)
        b.label("L_end2")
        b("s_endpgm")
        out += b.text()
        kds += kd("comb_kernel", 64)
    out += '.section .rodata,"a"\n' + kds
    return out


def main():
    ap = argparse.ArgumentParser()
    ap.add_argument("-W", type=int, default=4)
    ap.add_argument("--NS", type=int, default=8)
    ap.add_argument("--pol", default="nt")
    ap.add_argument("--outpol", default="")
    ap.add_argument("--map", default="lo")
    ap.add_argument("--order", default="contig")
    ap.add_argument("--mode", default="one")
    ap.add_argument("--stamp", type=int, default=0)
    ap.add_argument("--compute", type=int, default=1)
    ap.add_argument("--spin", type=int, default=200000)
    ap.add_argument("--null", type=int, default=0)
    ap.add_argument("--rot", type=int, default=0)
    ap.add_argument("--trot", type=int, default=0)
    ap.add_argument("--kvmix", type=int, default=0)
    ap.add_argument("--notree", type=int, default=0)
    ap.add_argument("--srot", type=int, default=0)
    ap.add_argument("-o", default="-")
    P = ap.parse_args()
    if P.outpol:
        P.outpol = " " + P.outpol
    s = gen(P)
    if P.o == "-":
        sys.stdout.write(s)
    else:
        open(P.o, "w").write(s)


if __name__ == "__main__":
    main()
```

```python
import sys, argparse, math
from gen import Asm, vr, f32bits, srd, kd, HEADER, NAME, WS_ML, WS_STAMP

LOG2E = math.log2(math.e)


def xlane(a, op, regs, tmps, steps):
    for st in steps:
        if st == 8:
            a("s_nop 1")
            for r in regs:
                a(f"{op}_dpp v{r}, v{r}, v{r} row_ror:8 row_mask:0xf bank_mask:0xf")
        else:
            for r, t in zip(regs, tmps):
                a(f"v_mov_b32 v{t}, v{r}")
            if len(regs) < 3:
                a(f"s_nop {2 - len(regs)}")
            for r, t in zip(regs, tmps):
                a(f"v_permlane{st}_swap_b32 v{r}, v{t}")
            for r, t in zip(regs, tmps):
                a(f"{op} v{r}, v{r}, v{t}")


def gen(P):
    W, NS = 4, P.NS
    NT = 16
    RING = NS * 4096
    SCR = W * RING
    LDS = SCR + 1024
    pol = (" " + P.pol) if P.pol else ""
    CSC = (128 ** -0.5) * LOG2E
    a = Asm()
    kname = NAME + "_kernel"
    a.lines.append(f".globl {kname}\n.p2align 8\n.type {kname},@function")
    a.label(kname)
    vTid = a.vreg(); vLane = a.vreg(); vG = a.vreg(); vN = a.vreg()
    vT = a.vreg(8, 4)
    vKs = a.vreg(4); vVs = a.vreg(2); vKr = a.vreg(4); vVr = a.vreg(8)
    vPub = a.vreg(); vM = a.vreg(); vL = a.vreg(2)
    vOw = a.vreg(); vOr = a.vreg(4); vMr = a.vreg(); vMw = a.vreg(); vFine = a.vreg()
    vQ = a.vreg(16, 4)
    vF = a.vreg(32, 4)
    vAcc = a.vreg(32, 4)
    vP = a.vreg(8, 4)
    vS = a.vreg(64, 4)
    sW, sLds, sGrp, sSp = 22, 23, 60, 61
    sBase, sOff, sMask, sC = 62, 63, 65, 66
    fine = []

    def stamp(i):
        if P.stamp:
            a(f"s_memrealtime s[{72 + 2 * i}:{73 + 2 * i}]")

    def fstamp(name):
        if P.stamp >= 2:
            a("s_memrealtime s[92:93]")
            a("s_waitcnt lgkmcnt(0)")
            a(f"v_writelane_b32 v{vFine}, s92, {len(fine)}")
            fine.append(name)

    a("s_cmp_ge_u32 s2, 256")
    a("s_cbranch_scc1 L_end")
    a("s_load_dwordx16 s[4:19], s[0:1], 0")
    a("s_load_dwordx2 s[20:21], s[0:1], 64")
    stamp(0)
    a(f"v_lshrrev_b32 v{vT}, 6, v0")
    a(f"v_and_b32 v{vLane}, 63, v0")
    a(f"v_readfirstlane_b32 s{sW}, v{vT}")
    a(f"v_lshrrev_b32 v{vG}, 4, v{vLane}")
    a(f"v_and_b32 v{vN}, 15, v0")
    if P.map == "lo":
        a(f"s_and_b32 s{sGrp}, s2, 7")
        a(f"s_lshr_b32 s{sSp}, s2, 3")
    else:
        a(f"s_lshr_b32 s{sGrp}, s2, 5")
        a(f"s_and_b32 s{sSp}, s2, 31")
    a(f"v_and_b32 v{vT + 4}, 7, v{vN}")
    a(f"v_lshlrev_b32 v{vT + 4}, 8, v{vT + 4}")
    a(f"v_lshl_add_u32 v{vT + 4}, v{vG}, 4, v{vT + 4}")
    a(f"s_lshl_b32 s71, s{sGrp}, 11")
    a(f"s_mov_b32 s{sC}, {f32bits(CSC)}")
    a(f"s_cmp_eq_u32 s{sW}, 4")
    a("s_cbranch_scc1 L_helper")
    a(f"v_lshlrev_b32 v{vT + 1}, 8, v{vG}")
    a(f"v_xor_b32 v{vT + 2}, v{vN}, v{vG}")
    for i in range(4):
        if i:
            a(f"v_xor_b32 v{vT + 3}, {4 * i}, v{vT + 2}")
            a(f"v_lshl_add_u32 v{vKs + i}, v{vT + 3}, 4, v{vT + 1}")
        else:
            a(f"v_lshl_add_u32 v{vKs + i}, v{vT + 2}, 4, v{vT + 1}")
    a(f"s_mul_i32 s{sLds}, s{sW}, {RING}")
    a(f"s_mul_i32 s67, s{sGrp}, {P.rot}")
    a(f"s_add_u32 s67, s67, s{sSp}")
    a(f"s_and_b32 s67, s67, 31")
    a(f"s_lshl_b32 s67, s67, 18")
    a(f"s_lshl_b32 s{sBase}, s{sGrp}, 23")
    a(f"s_add_u32 s{sBase}, s{sBase}, s67")
    a(f"s_lshl_b32 s67, s{sW}, 12")
    a(f"s_add_u32 s{sBase}, s{sBase}, s67")
    a("s_mov_b32 s26, 0x4000000")
    a("s_mov_b32 s27, 0x00020000")
    a(f"s_mov_b32 m0, s{sLds}")
    a("s_waitcnt lgkmcnt(0)")
    a("s_mov_b32 s24, s6")
    a("s_and_b32 s25, s7, 0xffff")
    stride = 16384
    tiles = [("k", t) for t in range(NT)] + [("v", t) for t in range(NT)]

    def issue(idx, first=False):
        kind, t = tiles[idx]
        slot = idx % NS
        if first:
            so = sBase
        else:
            a(f"s_add_u32 m0, s{sLds}, {slot * 4096}")
            a(f"s_add_u32 s{sOff}, s{sBase}, {t * stride}")
            so = sOff
        for i in range(4):
            if kind == "k":
                a.vmem(f"buffer_load_dwordx4 v{vKs + i}, s[24:27], s{so} offen offset:{1024 * i}{pol} lds", ("t", idx))
            else:
                a.vmem(f"buffer_load_dwordx4 v{vVs + (i & 1)}, s[28:31], s{so} offen offset:{1024 * i}{pol} lds", ("t", idx))

    def qload(track=True):
        srd(a, 32, 4, 16384)
        for j in range(4):
            s = f"buffer_load_dwordx4 {vr(vQ + 4 * j, 4)}, v{vT + 4}, s[32:35], s71 offen offset:{64 * j}"
            a.vmem(s, "q") if track else a(s)

    for idx in range(NS):
        if idx == P.qpos:
            qload()
        issue(idx, first=(idx == 0))
    if P.qpos >= NS:
        qload()
    fstamp("issued")
    a(f"v_lshlrev_b32 v{vT + 2}, 1, v{vG}")
    a(f"v_xor_b32 v{vT + 2}, v{vT + 2}, v{vN}")
    a(f"v_lshl_add_u32 v{vVs}, v{vT + 2}, 4, v{vT + 1}")
    a(f"v_xor_b32 v{vT + 2}, 8, v{vT + 2}")
    a(f"v_lshl_add_u32 v{vVs + 1}, v{vT + 2}, 4, v{vT + 1}")
    srd(a, 28, 8, 1 << 26)
    srd(a, 36, 20, 1 << 28)
    a(f"v_lshrrev_b32 v{vT + 6}, 3, v{vTid}")
    a(f"v_lshlrev_b32 v{vT + 6}, 12, v{vT + 6}")
    a(f"v_and_b32 v{vT + 7}, 7, v{vTid}")
    a(f"v_lshl_add_u32 v{vPub}, v{vT + 7}, 4, v{vT + 6}")
    a(f"s_lshl_b32 s68, s{sGrp}, 17")
    a(f"s_lshl_b32 s69, s{sSp}, 7")
    a(f"s_add_u32 s68, s68, s69")
    for j in range(4):
        a(f"v_or_b32 v{vT + 2}, {4 * j}, v{vG}")
        a(f"v_xor_b32 v{vT + 2}, v{vT + 2}, v{vN}")
        a(f"v_lshlrev_b32 v{vT + 2}, 4, v{vT + 2}")
        a(f"v_lshl_add_u32 v{vT + 2}, v{vN}, 8, v{vT + 2}")
        a(f"v_add_u32 v{vKr + j}, s{sLds}, v{vT + 2}")
    a(f"v_lshrrev_b32 v{vT + 2}, 2, v{vN}")
    a(f"v_lshl_add_u32 v{vT + 2}, v{vG}, 2, v{vT + 2}")
    a(f"v_and_b32 v{vT + 3}, 3, v{vN}")
    a(f"v_lshlrev_b32 v{vT + 3}, 3, v{vT + 3}")
    a(f"v_lshl_add_u32 v{vT + 3}, v{vT + 2}, 8, v{vT + 3}")
    a(f"v_add_u32 v{vT + 3}, s{sLds}, v{vT + 3}")
    a(f"v_and_b32 v{vT + 2}, 7, v{vT + 2}")
    for t in range(8):
        a(f"v_xor_b32 v{vT + 4}, {t}, v{vT + 2}")
        a(f"v_lshl_add_u32 v{vVr + t}, v{vT + 4}, 5, v{vT + 3}")
    a(f"v_mul_u32_u24 v{vOw}, 528, v{vN}")
    a(f"v_lshl_add_u32 v{vOw}, v{vG}, 4, v{vOw}")
    a(f"v_add_u32 v{vOw}, s{sLds}, v{vOw}")
    a(f"v_lshrrev_b32 v{vT + 1}, 5, v{vTid}")
    a(f"v_mul_u32_u24 v{vOr}, 528, v{vT + 1}")
    a(f"v_and_b32 v{vT + 2}, 31, v{vTid}")
    a(f"v_lshl_add_u32 v{vOr}, v{vT + 2}, 4, v{vOr}")
    per = max(1, 65536 // RING)
    nreg = (W + per - 1) // per
    for r in range(1, nreg):
        a(f"v_add_u32 v{vOr + r}, {r * per * RING}, v{vOr}")
    a(f"v_lshlrev_b32 v{vMr}, 4, v{vT + 1}")
    a(f"v_add_u32 v{vMr}, {SCR}, v{vMr}")
    a(f"s_lshl_b32 s67, s{sW}, 2")
    a(f"s_add_u32 s67, s67, {SCR}")
    a(f"v_lshlrev_b32 v{vMw}, 4, v{vN}")
    a(f"v_add_u32 v{vMw}, s67, v{vMw}")
    a(f"v_mov_b32 v{vM}, 0xff800000")
    if P.stamp:
        a("s_mov_b32 s59, 0")
    a("s_barrier")

    nxt = NS
    for t in range(NT):
        slot = t % NS
        a.wait_vm(("t", t))
        fstamp(f"k{t}")
        if t == 0:
            stamp(1)
        for j in range(4):
            a(f"ds_read_b128 {vr(vF + 4 * j, 4)}, v{vKr + j} offset:{slot * 4096}")
        a("s_waitcnt lgkmcnt(0)")
        issue(nxt)
        nxt += 1
        if t >= 1:
            b = vS + 4 * (t - 1)
            a(f"v_max3_f32 v{vM}, v{vM}, v{b}, v{b + 1}")
            a(f"v_max3_f32 v{vM}, v{vM}, v{b + 2}, v{b + 3}")
        a.wait_vm("q")
        for j in range(4):
            c = "0" if j == 0 else vr(vS + 4 * t, 4)
            a(f"v_mfma_f32_16x16x32_bf16 {vr(vS + 4 * t, 4)}, {vr(vF + 4 * j, 4)}, {vr(vQ + 4 * j, 4)}, {c}")
    stamp(2)
    a(f"v_mov_b32 v{vL}, 0")
    a(f"v_mov_b32 v{vL + 1}, 0")
    a("s_nop 5")
    b = vS + 4 * (NT - 1)
    a(f"v_max3_f32 v{vM}, v{vM}, v{b}, v{b + 1}")
    a(f"v_max3_f32 v{vM}, v{vM}, v{b + 2}, v{b + 3}")
    xlane(a, "v_max_f32", [vM], [vT], [16, 32])
    a(f"v_mul_f32 v{vM}, s{sC}, v{vM}")
    a(f"v_min_u32 v{vT}, -2, v{vM}")
    a(f"ds_write_b32 v{vMw}, v{vT}")

    def pcalc(s):
        b = vS + 8 * s
        p = vP + 4 * (s & 1)
        for i in range(8):
            a(f"v_fma_f32 v{b + i}, v{b + i}, s{sC}, -v{vM}")
        for i in range(8):
            a(f"v_exp_f32 v{b + i}, v{b + i}")
        a("s_nop 0")
        for i in range(4):
            a(f"v_add_f32 v{vL}, v{vL}, v{b + 2 * i}")
            a(f"v_add_f32 v{vL + 1}, v{vL + 1}, v{b + 2 * i + 1}")
            a(f"v_cvt_pk_bf16_f32 v{p + i}, v{b + 2 * i}, v{b + 2 * i + 1}")

    stamp(3)
    for t in range(NT):
        idx = NT + t
        slot = idx % NS
        h = t & 1
        s = t // 2
        last = t == NT - 1
        if t == NT - 2:
            a(f"v_add_f32 v{vL}, v{vL}, v{vL + 1}")
            xlane(a, "v_add_f32", [vL], [vT], [16, 32])
            a(f"ds_write_b32 v{vMw}, v{vL} offset:256")
            a("s_mov_b32 s56, 0x00ff00ff")
            a("s_mov_b32 s57, 0x00ff00ff")
        a.wait_vm(("t", idx))
        fstamp(f"v{t}")
        if last:
            stamp(4)
            if P.stamp:
                a("s_waitcnt lgkmcnt(0)")
        for d in range(8):
            a(f"ds_read_b64_tr_b16 {vr(vF + 4 * d + 2 * h, 2)}, v{vVr + d} offset:{slot * 4096}")
        if nxt < len(tiles):
            a("s_waitcnt lgkmcnt(0)")
            issue(nxt)
            nxt += 1
            counted = False
        else:
            counted = True
        if h == 1:
            for d in range(8):
                if counted:
                    a(f"s_waitcnt lgkmcnt({7 - d})")
                c = "0" if s == 0 else vr(vAcc + 4 * d, 4)
                a(f"v_mfma_f32_16x16x32_bf16 {vr(vAcc + 4 * d, 4)}, {vr(vF + 4 * d, 4)}, {vr(vP + 4 * (s & 1), 4)}, {c}")
        else:
            if s == 0:
                pcalc(0)
            if s + 1 < NT // 2:
                pcalc(s + 1)
    a("s_mov_b64 exec, s[56:57]")
    a("s_nop 0")
    for d in range(8):
        if d == 7:
            a("s_nop 0")
        a(f"ds_write_b128 v{vOw}, {vr(vAcc + 4 * d, 4)} offset:{64 * d}")
    a("s_mov_b64 exec, -1")
    a("s_waitcnt lgkmcnt(0)")
    a("s_barrier")
    R = vS
    a(f"ds_read_b128 {vr(R, 4)}, v{vMr} offset:512")
    for w in range(4):
        a(f"ds_read_b128 {vr(vF + 4 * w, 4)}, v{vOr + w // per} offset:{(w % per) * RING}")
    a("s_waitcnt lgkmcnt(3)")
    for c in range(4):
        a(f"v_mul_f32 v{vF + c}, v{R}, v{vF + c}")
    for w in range(1, 4):
        a(f"s_waitcnt lgkmcnt({3 - w})")
        for c in range(4):
            a(f"v_fmac_f32 v{vF + c}, v{R + w}, v{vF + 4 * w + c}")
    for c in range(4):
        a(f"v_min_u32 v{vF + c}, -2, v{vF + c}")
    a(f"buffer_store_dwordx4 {vr(vF, 4)}, v{vPub}, s[36:39], s68 offen sc1")
    stamp(5)
    a("s_branch L_fin" if P.stamp else "s_endpgm")

    a.label("L_helper")
    H = vF
    a(f"v_mov_b32 v{H}, -1")
    a(f"v_lshlrev_b32 v{H + 1}, 2, v{vLane}")
    a(f"v_add_u32 v{H + 1}, {SCR}, v{H + 1}")
    a(f"ds_write_b32 v{H + 1}, v{H}")
    a("s_waitcnt lgkmcnt(0)")
    a("s_barrier")
    srd(a, 36, 20, 1 << 28)
    srd(a, 40, 16, 16384)
    srd(a, 44, 18, 256)
    srd(a, 48, 10, 2048)
    srd(a, 52, 12, 2048)
    a("s_load_dword s65, s[14:15], 0")
    if P.stamp:
        a("s_mov_b32 s59, 0")
    a(f"v_lshrrev_b32 v{vT + 6}, 3, v{vLane}")
    a(f"v_lshlrev_b32 v{vT + 6}, 12, v{vT + 6}")
    a(f"v_and_b32 v{vT + 7}, 7, v{vLane}")
    a(f"v_lshl_add_u32 v{vPub}, v{vT + 7}, 4, v{vT + 6}")
    a(f"s_lshl_b32 s68, s{sGrp}, 17")
    a(f"s_lshl_b32 s69, s{sSp}, 7")
    a(f"s_add_u32 s68, s68, s69")
    a(f"s_lshl_b32 s69, s{sSp}, 3")
    a(f"s_lshl_b32 s67, s{sGrp}, 13")
    a(f"s_add_u32 s69, s69, s67")
    a(f"s_add_u32 s69, s69, {WS_ML}")
    a(f"s_lshl_b32 s70, s{sGrp}, 2")
    if P.hdelay:
        a(f"s_sleep {P.hdelay}")
    for c in range(1, 4):
        a(f"v_mov_b32 v{H + c}, -1")
    vMlo = vKs
    a(f"v_lshlrev_b32 v{vMlo}, 8, v{vLane}")
    for i in range(4):
        a(f"s_add_u32 s67, s68, {i * 8 * 4096}")
        a(f"buffer_store_dwordx4 {vr(H, 4)}, v{vPub}, s[36:39], s67 offen sc1")
    a("s_mov_b32 exec_hi, 0")
    a(f"buffer_store_dwordx2 {vr(H, 2)}, v{vMlo}, s[36:39], s69 offen sc1")
    a("s_mov_b64 exec, -1")
    qload(track=False)
    KT = vAcc
    VT = vP
    a(f"s_lshl_b32 s67, s{sGrp}, 8")
    a(f"v_lshlrev_b32 v{vT}, 4, v{vG}")
    for j in range(4):
        a(f"buffer_load_dwordx4 {vr(KT + 4 * j, 4)}, v{vT}, s[48:51], s67 offen offset:{64 * j}")
    a(f"s_and_b32 s58, s{sSp}, 3")
    a(f"s_lshl_b32 s58, s58, 6")
    a(f"s_add_u32 s67, s67, s58")
    a(f"v_and_b32 v{vT + 1}, 7, v{vLane}")
    a(f"v_lshlrev_b32 v{vT + 1}, 3, v{vT + 1}")
    a(f"buffer_load_dwordx2 {vr(VT + 4, 2)}, v{vT + 1}, s[52:55], s67 offen")
    a("s_waitcnt vmcnt(0) lgkmcnt(0)")
    a(f"v_mov_b32 v{H + 4}, 1")
    a("s_mov_b64 exec, 1")
    if not P.nosig:
        a(f"buffer_atomic_add v{H + 4}, off, s[44:47], s70")
    a("s_mov_b64 exec, -1")
    for j in range(4):
        c = "0" if j == 0 else vr(H + 8, 4)
        a(f"v_mfma_f32_16x16x32_bf16 {vr(H + 8, 4)}, {vr(KT + 4 * j, 4)}, {vr(vQ + 4 * j, 4)}, {c}")
    a(f"s_lshr_b32 s67, s{sGrp}, 2")
    a(f"s_lshl_b32 s67, s67, 4")
    a(f"s_lshr_b32 s{sMask}, s{sMask}, s67")
    a(f"s_lshl_b32 s{sMask}, s{sMask}, 16")
    a(f"s_lshr_b32 s58, s{sSp}, 2")
    a(f"v_mov_b32 v{vT}, s{sMask}")
    a(f"v_sub_f32 v{vT}, 1.0, v{vT}")
    a(f"v_mul_f32 v{vT}, {f32bits(-1e9 * LOG2E)}, v{vT}")
    a(f"v_lshlrev_b32 v{VT}, 16, v{VT + 4}")
    a(f"v_and_b32 v{VT + 1}, 0xffff0000, v{VT + 4}")
    a(f"v_lshlrev_b32 v{VT + 2}, 16, v{VT + 5}")
    a(f"v_and_b32 v{VT + 3}, 0xffff0000, v{VT + 5}")
    a(f"v_fma_f32 v{vT}, v{H + 8}, s{sC}, v{vT}")
    a("s_nop 0")
    a(f"v_readlane_b32 s64, v{vT}, s58")
    vMa = vKs + 1
    a(f"v_lshrrev_b32 v{vMa}, 2, v{vLane}")
    a(f"v_lshlrev_b32 v{vMa}, 4, v{vMa}")
    a(f"v_add_u32 v{vMa}, {SCR}, v{vMa}")
    a("s_mov_b32 s59, 0")
    a.label("L_mw")
    a("s_sleep 16")
    a(f"ds_read_b128 {vr(H, 4)}, v{vMa}")
    a("s_waitcnt lgkmcnt(0)")
    a(f"v_max3_u32 v{vT}, v{H}, v{H + 1}, v{H + 2}")
    a(f"v_max_u32 v{vT}, v{vT}, v{H + 3}")
    a(f"v_cmp_eq_u32 vcc, -1, v{vT}")
    a("s_add_u32 s59, s59, 1")
    a(f"s_cmp_lt_u32 s59, {P.spin}")
    a("s_cselect_b64 vcc, vcc, 0")
    a("s_nop 0")
    a("s_cbranch_vccnz L_mw")
    a(f"buffer_load_dword v{H + 4}, off, s[44:47], s70")
    MW = vVr
    a(f"v_max3_f32 v{MW}, v{H}, v{H + 1}, v{H + 2}")
    a(f"v_max_f32 v{MW}, v{MW}, v{H + 3}")
    for w in range(4):
        a(f"v_sub_f32 v{H + w}, v{H + w}, v{MW}")
    for w in range(4):
        a(f"v_exp_f32 v{H + w}, v{H + w}")
    a(f"v_min_u32 v{MW}, -2, v{MW}")
    a(f"ds_write_b128 v{vMa}, {vr(H, 4)} offset:512")
    a("s_waitcnt vmcnt(0)")
    a(f"v_cmp_gt_u32 vcc, {0 if P.nosig else 32}, v{H + 4}")
    a("s_cbranch_vccz L_cntok")
    a("s_mov_b32 s59, 0")
    a.label("L_cnt")
    a("s_sleep 32")
    a(f"buffer_load_dword v{H + 4}, off, s[44:47], s70 sc1")
    a("s_waitcnt vmcnt(0)")
    a(f"v_cmp_gt_u32 vcc, 32, v{H + 4}")
    a("s_add_u32 s59, s59, 1")
    a(f"s_cmp_lt_u32 s59, {P.spin}")
    a("s_cselect_b64 vcc, vcc, 0")
    a("s_nop 0")
    a("s_cbranch_vccnz L_cnt")
    a.label("L_cntok")
    O = vS
    ML = vS + 16
    X = vS + 24
    vA, vB, vO = vKs + 2, vKs + 3, vVs
    a(f"v_lshlrev_b32 v{vA}, 4, v{vLane}")
    a(f"v_lshrrev_b32 v{vB}, 3, v{vLane}")
    a(f"v_lshlrev_b32 v{vB}, 3, v{vB}")
    a(f"v_lshlrev_b32 v{vO}, 3, v{vLane}")
    a(f"s_lshl_b32 s56, s{sGrp}, 17")
    a(f"s_lshl_b32 s57, s{sSp}, 12")
    a(f"s_add_u32 s56, s56, s57")
    a(f"s_lshl_b32 s57, s{sGrp}, 13")
    a(f"s_lshl_b32 s58, s{sSp}, 8")
    a(f"s_add_u32 s57, s57, s58")
    a(f"s_add_u32 s57, s57, {WS_ML}")
    a(f"s_lshl_b32 s58, s{sGrp}, 11")
    a(f"s_lshl_b32 s67, s{sSp}, 6")
    a(f"s_add_u32 s58, s58, s67")
    a("s_mov_b32 s59, 0")
    stamp(4)
    a("s_waitcnt lgkmcnt(0)")
    a("s_barrier")
    a(f"ds_read_b128 {vr(H + 4, 4)}, v{vMa} offset:256")
    a("s_waitcnt lgkmcnt(0)")
    a(f"v_mul_f32 v{MW + 1}, v{H}, v{H + 4}")
    for w in range(1, 4):
        a(f"v_fmac_f32 v{MW + 1}, v{H + w}, v{H + 4 + w}")
    a(f"v_min_u32 v{MW + 1}, -2, v{MW + 1}")
    a("s_mov_b32 exec_hi, 0")
    a(f"buffer_store_dwordx2 {vr(MW, 2)}, v{vMlo}, s[36:39], s69 offen sc1")
    a("s_mov_b64 exec, -1")
    stamp(5)
    a.label("L_poll")
    for i in range(4):
        a(f"buffer_load_dwordx4 {vr(O + 4 * i, 4)}, v{vA}, s[36:39], s56 offen offset:{1024 * i} sc1")
    for i in range(4):
        a(f"buffer_load_dwordx2 {vr(ML + 2 * i, 2)}, v{vB}, s[36:39], s57 offen offset:{64 * i} sc1")
    a("s_waitcnt vmcnt(0)")
    a(f"v_max3_u32 v{X}, v{O}, v{O + 1}, v{O + 2}")
    a(f"v_max3_u32 v{X + 1}, v{O + 3}, v{O + 4}, v{O + 5}")
    regs = list(range(O + 6, O + 24))
    k = 0
    while regs:
        a(f"v_max3_u32 v{X + k}, v{X + k}, v{regs[0]}, v{regs[1]}")
        regs = regs[2:]
        k ^= 1
    a(f"v_max_u32 v{X}, v{X}, v{X + 1}")
    a(f"v_cmp_eq_u32 vcc, -1, v{X}")
    a("s_add_u32 s59, s59, 1")
    a(f"s_cmp_lt_u32 s59, {P.spin}")
    a("s_cselect_b64 vcc, vcc, 0")
    a("s_nop 0")
    a("s_cbranch_vccnz L_poll")
    M, T = X, X + 1
    a(f"v_max3_f32 v{M}, v{ML}, v{ML + 2}, v{ML + 4}")
    a(f"v_max3_f32 v{M}, v{M}, v{ML + 6}, s64")
    xlane(a, "v_max_f32", [M], [T], [8, 16, 32])
    Wt = X + 2
    for i in range(4):
        a(f"v_sub_f32 v{Wt + i}, v{ML + 2 * i}, v{M}")
    a(f"v_sub_f32 v{Wt + 4}, s64, v{M}")
    for i in range(5):
        a(f"v_exp_f32 v{Wt + i}, v{Wt + i}")
    Rr = X + 8
    C = X + 16
    for c in range(4):
        a(f"v_mul_f32 v{Rr + c}, v{Wt}, v{O + c}")
    a(f"v_mul_f32 v{Rr + 4}, v{Wt}, v{ML + 1}")
    for i in range(1, 4):
        for c in range(4):
            a(f"v_fmac_f32 v{Rr + c}, v{Wt + i}, v{O + 4 * i + c}")
        a(f"v_fmac_f32 v{Rr + 4}, v{Wt + i}, v{ML + 2 * i + 1}")
    xlane(a, "v_add_f32", [Rr + 4] + [Rr + c for c in range(4)], [C + c for c in range(5)], [8, 16, 32])
    a(f"v_add_f32 v{Rr + 4}, v{Rr + 4}, v{Wt + 4}")
    a(f"v_rcp_f32 v{Rr + 4}, v{Rr + 4}")
    for c in range(4):
        a(f"v_fmac_f32 v{Rr + c}, v{Wt + 4}, v{VT + c}")
    for c in range(4):
        a(f"v_mul_f32 v{Rr + c}, v{Rr + c}, v{Rr + 4}")
    a(f"v_cvt_pk_bf16_f32 v{C}, v{Rr}, v{Rr + 1}")
    a(f"v_cvt_pk_bf16_f32 v{C + 1}, v{Rr + 2}, v{Rr + 3}")
    a("s_mov_b64 exec, 0xff")
    a(f"buffer_store_dwordx2 {vr(C, 2)}, v{vO}, s[40:43], s58 offen{P.outpol}")
    a.label("L_fin")
    if P.stamp:
        a("s_mov_b64 exec, -1")
        a("s_waitcnt vmcnt(0)")
        stamp(6)
        a(f"s_getreg_b32 s90, hwreg(HW_REG_XCC_ID)")
        a(f"s_getreg_b32 s91, hwreg(HW_REG_HW_ID)")
        a("s_waitcnt lgkmcnt(0)")
        vals = [f"s{72 + 2 * i}" for i in range(7)] + ["0", "s90", "s91", "s59", "0"]
        for i, s in enumerate(vals):
            a(f"v_mov_b32 v{vAcc + i}, {s}")
        a(f"s_mul_i32 s56, s2, 5")
        a(f"s_add_u32 s56, s56, s{sW}")
        a(f"s_lshl_b32 s56, s56, 6")
        a(f"s_add_u32 s56, s56, {WS_STAMP}")
        if P.stamp >= 2:
            a(f"s_sub_u32 s57, s56, {WS_STAMP}")
            a(f"s_lshl_b32 s57, s57, 2")
            a(f"s_add_u32 s57, s57, {WS_STAMP * 2}")
            a(f"v_lshlrev_b32 v{vT}, 2, v{vLane}")
            a(f"buffer_store_dword v{vFine}, v{vT}, s[36:39], s57 offen")
            a.comment("FINE " + " ".join(fine))
        a("s_mov_b64 exec, 1")
        for i in range(3):
            a(f"buffer_store_dwordx4 {vr(vAcc + 4 * i, 4)}, off, s[36:39], s56 offset:{16 * i}")
    a.label("L_end")
    a("s_endpgm")
    out = HEADER + f"; @launch grid=(256,1,1) block=(320,1,1) lds={LDS}\n"
    out += '.amdgcn_target "amdgcn-amd-amdhsa--gfx950"\n.text\n' + a.text()
    out += '.section .rodata,"a"\n' + kd(kname, a.nv, 96)
    return out


def main():
    ap = argparse.ArgumentParser()
    ap.add_argument("--NS", type=int, default=4)
    ap.add_argument("--pol", default="nt")
    ap.add_argument("--outpol", default="")
    ap.add_argument("--map", default="lo")
    ap.add_argument("--rot", type=int, default=0)
    ap.add_argument("--qpos", type=int, default=1)
    ap.add_argument("--hdelay", type=int, default=0)
    ap.add_argument("--nosig", type=int, default=0)
    ap.add_argument("--stamp", type=int, default=0)
    ap.add_argument("--spin", type=int, default=200000)
    ap.add_argument("-o", default="-")
    P = ap.parse_args()
    if P.outpol:
        P.outpol = " " + P.outpol
    s = gen(P)
    if P.o == "-":
        sys.stdout.write(s)
    else:
        open(P.o, "w").write(s)


if __name__ == "__main__":
    main()
```

```python
import sys, argparse, math
from gen import Asm, vr, f32bits, srd, kd, HEADER, NAME, WS_STAMP
from gen5 import xlane

LOG2E = math.log2(math.e)
WS_ML = 2 << 20


def gen(P):
    W, NS = 4, P.NS
    NT = 16
    RING = NS * 4096
    SCR = W * RING
    LDS = SCR + 768
    pol = (" " + P.pol) if P.pol else ""
    CSC = (128 ** -0.5) * LOG2E
    a = Asm()
    kname = NAME + "_kernel"
    a.lines.append(f".globl {kname}\n.p2align 8\n.type {kname},@function")
    a.label(kname)
    vTid = a.vreg(); vLane = a.vreg(); vG = a.vreg(); vN = a.vreg()
    vT = a.vreg(8, 4)
    vKs = a.vreg(4); vVs = a.vreg(2); vKr = a.vreg(4); vVr = a.vreg(8)
    vNon = a.vreg(4, 4); vL = a.vreg(2)
    vPub = a.vreg(); vM = a.vreg(); vMlo = a.vreg()
    vOw = a.vreg(); vOr = a.vreg(4); vMr = a.vreg(); vMw = a.vreg(); vFine = a.vreg()
    vA = a.vreg(); vB = a.vreg(); vO = a.vreg()
    vVT = a.vreg(6, 2)
    vQ = a.vreg(16, 4)
    vF = a.vreg(32, 4)
    vAcc = a.vreg(32, 4)
    vP = a.vreg(8, 4)
    vS = a.vreg(64, 4)
    sW, sLds, sGrp, sSp = 22, 23, 60, 61
    sBase, sOff, sMask, sC = 62, 63, 65, 66
    fine = []

    def stamp(i):
        if P.stamp:
            a(f"s_memrealtime s[{72 + 2 * i}:{73 + 2 * i}]")

    def fstamp(name):
        if P.stamp >= 2:
            a("s_memrealtime s[92:93]")
            a("s_waitcnt lgkmcnt(0)")
            a(f"v_writelane_b32 v{vFine}, s92, {len(fine)}")
            fine.append(name)

    a("s_cmp_ge_u32 s2, 256")
    a("s_cbranch_scc1 L_end")
    a("s_load_dwordx16 s[4:19], s[0:1], 0")
    a("s_load_dwordx2 s[20:21], s[0:1], 64")
    a("s_memrealtime s[54:55]")
    stamp(0)
    a(f"v_lshrrev_b32 v{vT}, 6, v0")
    a(f"v_and_b32 v{vLane}, 63, v0")
    a(f"v_readfirstlane_b32 s{sW}, v{vT}")
    a(f"v_lshrrev_b32 v{vG}, 4, v{vLane}")
    a(f"v_and_b32 v{vN}, 15, v0")
    if P.map == "lo":
        a(f"s_and_b32 s{sGrp}, s2, 7")
        a(f"s_lshr_b32 s{sSp}, s2, 3")
    else:
        a(f"s_lshr_b32 s{sGrp}, s2, 5")
        a(f"s_and_b32 s{sSp}, s2, 31")
    a(f"v_lshlrev_b32 v{vT + 1}, 8, v{vG}")
    a(f"v_xor_b32 v{vT + 2}, v{vN}, v{vG}")
    for i in range(4):
        if i:
            a(f"v_xor_b32 v{vT + 3}, {4 * i}, v{vT + 2}")
            a(f"v_lshl_add_u32 v{vKs + i}, v{vT + 3}, 4, v{vT + 1}")
        else:
            a(f"v_lshl_add_u32 v{vKs + i}, v{vT + 2}, 4, v{vT + 1}")
    a(f"v_and_b32 v{vT + 4}, 7, v{vN}")
    a(f"v_lshlrev_b32 v{vT + 4}, 8, v{vT + 4}")
    a(f"v_lshl_add_u32 v{vT + 4}, v{vG}, 4, v{vT + 4}")
    a(f"s_lshl_b32 s71, s{sGrp}, 11")
    a(f"s_mul_i32 s{sLds}, s{sW}, {RING}")
    a(f"s_mul_i32 s67, s{sGrp}, {P.rot}")
    a(f"s_add_u32 s67, s67, s{sSp}")
    a(f"s_and_b32 s67, s67, 31")
    a(f"s_lshl_b32 s67, s67, 18")
    a(f"s_lshl_b32 s{sBase}, s{sGrp}, 23")
    a(f"s_add_u32 s{sBase}, s{sBase}, s67")
    a(f"s_lshl_b32 s67, s{sW}, 12")
    a(f"s_add_u32 s{sBase}, s{sBase}, s67")
    a("s_mov_b32 s26, 0x4000000")
    a("s_mov_b32 s27, 0x00020000")
    a(f"s_mov_b32 m0, s{sLds}")
    a("s_waitcnt lgkmcnt(0)")
    a("s_mov_b32 s24, s6")
    a("s_and_b32 s25, s7, 0xffff")
    stride = 16384
    tiles = [("k", t) for t in range(NT)] + [("v", t) for t in range(NT)]

    def issue(idx, first=False):
        kind, t = tiles[idx]
        slot = idx % NS
        if first:
            so = sBase
        else:
            a(f"s_add_u32 m0, s{sLds}, {slot * 4096}")
            a(f"s_add_u32 s{sOff}, s{sBase}, {t * stride}")
            so = sOff
        for i in range(4):
            if kind == "k":
                a.vmem(f"buffer_load_dwordx4 v{vKs + i}, s[24:27], s{so} offen offset:{1024 * i}{pol} lds", ("t", idx))
            else:
                a.vmem(f"buffer_load_dwordx4 v{vVs + (i & 1)}, s[28:31], s{so} offen offset:{1024 * i}{pol} lds", ("t", idx))

    def qload():
        srd(a, 32, 4, 16384)
        for j in range(4):
            a.vmem(f"buffer_load_dwordx4 {vr(vQ + 4 * j, 4)}, v{vT + 4}, s[32:35], s71 offen offset:{64 * j}", "q")

    for idx in range(NS):
        if idx == P.qpos:
            qload()
        issue(idx, first=(idx == 0))
        if idx == 0:
            srd(a, 44, 18, 256)
            a("s_getreg_b32 s86, hwreg(HW_REG_XCC_ID, 0, 4)")
            a(f"s_lshl_b32 s87, s{sGrp}, 4")
            a("s_add_u32 s86, s86, 1")
            a(f"s_or_b32 s67, s{sSp}, s{sW}")
            a("s_cbranch_scc1 L_nonon")
            a(f"v_mov_b32 v{vNon}, s54")
            a(f"v_mov_b32 v{vNon + 1}, s55")
            a(f"v_mov_b32 v{vNon + 2}, s86")
            a(f"v_mov_b32 v{vNon + 3}, 0")
            a("s_mov_b64 exec, 1")
            a(f"buffer_store_dwordx4 {vr(vNon, 4)}, off, s[44:47], s87 sc1")
            a("s_mov_b64 exec, -1")
            a.label("L_nonon")
    if P.qpos >= NS:
        qload()
    fstamp("issued")
    a(f"v_lshlrev_b32 v{vT + 2}, 1, v{vG}")
    a(f"v_xor_b32 v{vT + 2}, v{vT + 2}, v{vN}")
    a(f"v_lshl_add_u32 v{vVs}, v{vT + 2}, 4, v{vT + 1}")
    a(f"v_xor_b32 v{vT + 2}, 8, v{vT + 2}")
    a(f"v_lshl_add_u32 v{vVs + 1}, v{vT + 2}, 4, v{vT + 1}")
    srd(a, 28, 8, 1 << 26)
    srd(a, 36, 20, 1 << 28)
    srd(a, 40, 16, 16384)
    srd(a, 48, 10, 2048)
    srd(a, 32, 12, 2048)
    a("s_load_dword s65, s[14:15], 0")
    a(f"v_lshrrev_b32 v{vT + 6}, 3, v{vTid}")
    a(f"v_lshlrev_b32 v{vT + 6}, 13, v{vT + 6}")
    a(f"v_and_b32 v{vT + 7}, 7, v{vTid}")
    a(f"v_lshl_add_u32 v{vPub}, v{vT + 7}, 4, v{vT + 6}")
    a(f"s_lshl_b32 s68, s{sGrp}, 18")
    a(f"s_lshl_b32 s69, s{sSp}, 8")
    a(f"s_add_u32 s68, s68, s69")
    a(f"v_lshrrev_b32 v{vT + 6}, 5, v{vLane}")
    a(f"v_lshlrev_b32 v{vT + 6}, 6, v{vT + 6}")
    a(f"v_and_b32 v{vT + 7}, 3, v{vLane}")
    a(f"v_lshl_add_u32 v{vMlo}, v{vT + 7}, 4, v{vT + 6}")
    a(f"s_lshl_b32 s69, s{sGrp}, 5")
    a(f"s_add_u32 s69, s69, s{sSp}")
    a(f"s_lshl_b32 s69, s69, 2")
    a(f"s_add_u32 s69, s69, s{sW}")
    a(f"s_lshl_b32 s69, s69, 7")
    a(f"s_add_u32 s69, s69, {WS_ML}")
    for j in range(4):
        a(f"v_or_b32 v{vT + 2}, {4 * j}, v{vG}")
        a(f"v_xor_b32 v{vT + 2}, v{vT + 2}, v{vN}")
        a(f"v_lshlrev_b32 v{vT + 2}, 4, v{vT + 2}")
        a(f"v_lshl_add_u32 v{vT + 2}, v{vN}, 8, v{vT + 2}")
        a(f"v_add_u32 v{vKr + j}, s{sLds}, v{vT + 2}")
    a(f"v_lshrrev_b32 v{vT + 2}, 2, v{vN}")
    a(f"v_lshl_add_u32 v{vT + 2}, v{vG}, 2, v{vT + 2}")
    a(f"v_and_b32 v{vT + 3}, 3, v{vN}")
    a(f"v_lshlrev_b32 v{vT + 3}, 3, v{vT + 3}")
    a(f"v_lshl_add_u32 v{vT + 3}, v{vT + 2}, 8, v{vT + 3}")
    a(f"v_add_u32 v{vT + 3}, s{sLds}, v{vT + 3}")
    a(f"v_and_b32 v{vT + 2}, 7, v{vT + 2}")
    for t in range(8):
        a(f"v_xor_b32 v{vT + 4}, {t}, v{vT + 2}")
        a(f"v_lshl_add_u32 v{vVr + t}, v{vT + 4}, 5, v{vT + 3}")
    a(f"v_mul_u32_u24 v{vOw}, 528, v{vN}")
    a(f"v_lshl_add_u32 v{vOw}, v{vG}, 4, v{vOw}")
    a(f"v_add_u32 v{vOw}, s{sLds}, v{vOw}")
    a(f"v_lshrrev_b32 v{vT + 1}, 5, v{vTid}")
    a(f"v_mul_u32_u24 v{vOr}, 528, v{vT + 1}")
    a(f"v_and_b32 v{vT + 2}, 31, v{vTid}")
    a(f"v_lshl_add_u32 v{vOr}, v{vT + 2}, 4, v{vOr}")
    per = max(1, 65536 // RING)
    nreg = (W + per - 1) // per
    for r in range(1, nreg):
        a(f"v_add_u32 v{vOr + r}, {r * per * RING}, v{vOr}")
    a(f"v_lshlrev_b32 v{vMr}, 4, v{vT + 1}")
    a(f"v_add_u32 v{vMr}, {SCR}, v{vMr}")
    a(f"s_lshl_b32 s67, s{sW}, 2")
    a(f"s_add_u32 s67, s67, {SCR}")
    a(f"v_lshlrev_b32 v{vMw}, 4, v{vN}")
    a(f"v_add_u32 v{vMw}, s67, v{vMw}")
    a(f"v_lshrrev_b32 v{vT + 6}, 3, v{vLane}")
    a(f"v_and_b32 v{vT + 7}, 7, v{vLane}")
    a(f"v_lshlrev_b32 v{vA}, 8, v{vT + 6}")
    a(f"v_lshl_add_u32 v{vA}, v{vT + 7}, 4, v{vA}")
    a(f"v_lshlrev_b32 v{vB}, 9, v{vT + 6}")
    a(f"v_lshlrev_b32 v{vO}, 3, v{vT + 7}")
    a(f"s_lshl_b32 s56, s{sGrp}, 18")
    a(f"s_lshl_b32 s57, s{sSp}, 13")
    a(f"s_add_u32 s56, s56, s57")
    a(f"s_add_u32 s52, s56, 4096")
    a(f"s_lshl_b32 s57, s{sGrp}, 14")
    a(f"s_lshl_b32 s58, s{sSp}, 4")
    a(f"s_add_u32 s57, s57, s58")
    a(f"s_add_u32 s57, s57, {WS_ML}")
    a(f"s_add_u32 s53, s57, 8192")
    a(f"s_lshl_b32 s58, s{sGrp}, 11")
    a(f"s_lshl_b32 s67, s{sSp}, 6")
    a(f"s_add_u32 s58, s58, s67")
    a(f"s_mov_b32 s{sC}, {f32bits(CSC)}")
    a(f"v_mov_b32 v{vM}, 0xff800000")
    a("s_mov_b32 s59, 0")

    nxt = NS
    for t in range(NT):
        slot = t % NS
        a.wait_vm(("t", t))
        fstamp(f"k{t}")
        if t == 0:
            stamp(1)
        for j in range(4):
            a(f"ds_read_b128 {vr(vF + 4 * j, 4)}, v{vKr + j} offset:{slot * 4096}")
        a("s_waitcnt lgkmcnt(0)")
        if t == P.ttree:
            a(f"s_cmp_lg_u32 s{sW}, 0")
            a("s_cbranch_scc1 L_notree0")
            a(f"s_lshl_b32 s67, s{sGrp}, 8")
            a(f"v_lshlrev_b32 v{vT}, 2, v{vLane}")
            a(f"s_mov_b32 m0, {SCR + 512}")
            a(f"s_and_b32 s70, s{sSp}, 3")
            a(f"buffer_load_dword v{vT}, s[48:51], s67 offen lds")
            a(f"s_lshl_b32 s70, s70, 6")
            a(f"s_add_u32 s67, s67, s70")
            a(f"buffer_load_dwordx2 {vr(vVT + 4, 2)}, v{vO}, s[32:35], s67 offen")
            a.label("L_notree0")
        issue(nxt)
        nxt += 1
        if t >= 1:
            b = vS + 4 * (t - 1)
            a(f"v_max3_f32 v{vM}, v{vM}, v{b}, v{b + 1}")
            a(f"v_max3_f32 v{vM}, v{vM}, v{b + 2}, v{b + 3}")
        a.wait_vm("q")
        for j in range(4):
            c = "0" if j == 0 else vr(vS + 4 * t, 4)
            a(f"v_mfma_f32_16x16x32_bf16 {vr(vS + 4 * t, 4)}, {vr(vF + 4 * j, 4)}, {vr(vQ + 4 * j, 4)}, {c}")
    assert P.ttree + NS < NT
    stamp(2)
    a(f"v_mov_b32 v{vL}, 0")
    a(f"v_mov_b32 v{vL + 1}, 0")
    a("s_nop 5")
    b = vS + 4 * (NT - 1)
    a(f"v_max3_f32 v{vM}, v{vM}, v{b}, v{b + 1}")
    a(f"v_max3_f32 v{vM}, v{vM}, v{b + 2}, v{b + 3}")
    xlane(a, "v_max_f32", [vM], [vT], [16, 32])
    a(f"v_mul_f32 v{vM}, s{sC}, v{vM}")
    a(f"ds_write_b32 v{vMw}, v{vM}")

    def pcalc(s):
        b = vS + 8 * s
        p = vP + 4 * (s & 1)
        for i in range(8):
            a(f"v_fma_f32 v{b + i}, v{b + i}, s{sC}, -v{vM}")
        for i in range(8):
            a(f"v_exp_f32 v{b + i}, v{b + i}")
        a("s_nop 0")
        for i in range(4):
            a(f"v_add_f32 v{vL}, v{vL}, v{b + 2 * i}")
            a(f"v_add_f32 v{vL + 1}, v{vL + 1}, v{b + 2 * i + 1}")
            a(f"v_cvt_pk_bf16_f32 v{p + i}, v{b + 2 * i}, v{b + 2 * i + 1}")

    def treecalc():
        KT = vS
        a(f"s_cmp_lg_u32 s{sW}, 0")
        a("s_cbranch_scc1 L_notree1")
        a(f"v_lshlrev_b32 v{vT}, 4, v{vG}")
        a(f"v_add_u32 v{vT}, {SCR + 512}, v{vT}")
        for j in range(4):
            a(f"ds_read_b128 {vr(KT + 4 * j, 4)}, v{vT} offset:{64 * j}")
        a("s_waitcnt lgkmcnt(0)")
        for j in range(4):
            c = "0" if j == 0 else vr(KT + 16, 4)
            a(f"v_mfma_f32_16x16x32_bf16 {vr(KT + 16, 4)}, {vr(KT + 4 * j, 4)}, {vr(vQ + 4 * j, 4)}, {c}")
        a(f"s_lshr_b32 s67, s{sGrp}, 2")
        a(f"s_lshl_b32 s67, s67, 4")
        a(f"s_lshr_b32 s{sMask}, s{sMask}, s67")
        a(f"s_lshl_b32 s{sMask}, s{sMask}, 16")
        a(f"s_lshr_b32 s70, s{sSp}, 2")
        a(f"v_mov_b32 v{vT}, s{sMask}")
        a(f"v_sub_f32 v{vT}, 1.0, v{vT}")
        a(f"v_mul_f32 v{vT}, {f32bits(-1e9 * LOG2E)}, v{vT}")
        a(f"v_lshlrev_b32 v{vVT}, 16, v{vVT + 4}")
        a(f"v_and_b32 v{vVT + 1}, 0xffff0000, v{vVT + 4}")
        a(f"v_lshlrev_b32 v{vVT + 2}, 16, v{vVT + 5}")
        a(f"v_and_b32 v{vVT + 3}, 0xffff0000, v{vVT + 5}")
        a(f"v_fma_f32 v{vT}, v{KT + 16}, s{sC}, v{vT}")
        a("s_nop 0")
        a(f"v_readlane_b32 s64, v{vT}, s70")
        a.label("L_notree1")

    stamp(3)
    TNON = P.tnon
    for t in range(NT):
        idx = NT + t
        slot = idx % NS
        h = t & 1
        s = t // 2
        last = t == NT - 1
        if t == NT - 2:
            a(f"v_add_f32 v{vL}, v{vL}, v{vL + 1}")
            xlane(a, "v_add_f32", [vL], [vT], [16, 32])
            a(f"ds_write_b32 v{vMw}, v{vL} offset:256")
            a(f"v_cmp_eq_u32 vcc, 0, v{vNon + 2}")
            a("s_cbranch_vccz L_nonok")
            a.label("L_non")
            a("s_sleep 8")
            a(f"buffer_load_dwordx4 {vr(vNon, 4)}, off, s[44:47], s87 sc1")
            a("s_waitcnt vmcnt(0)")
            a(f"v_cmp_eq_u32 vcc, 0, v{vNon + 2}")
            a("s_add_u32 s59, s59, 1")
            a(f"s_cmp_lt_u32 s59, {P.spin}")
            a("s_cselect_b64 vcc, vcc, 0")
            a("s_nop 0")
            a("s_cbranch_vccnz L_non")
            a.label("L_nonok")
            a(f"v_readfirstlane_b32 s54, v{vNon}")
            a(f"v_readfirstlane_b32 s55, v{vNon + 1}")
            a(f"v_readfirstlane_b32 s89, v{vNon + 2}")
            a("s_nop 3")
            a("s_cmp_eq_u32 s89, s86")
            a("s_cselect_b32 s88, 0, 0x80000000")
            G0, G1, G2 = vS + 32, vS + 36, vS + 40
            for g_ in (G0, G1, G2):
                a(f"v_mov_b32 v{g_ + 2}, v{vNon}")
                a(f"v_mov_b32 v{g_ + 3}, v{vNon + 1}")
            a("s_mov_b32 s50, 0x00ff00ff")
            a("s_mov_b32 s51, 0x00ff00ff")
            a("s_mov_b32 s59, 0")
        a.wait_vm(("t", idx))
        fstamp(f"v{t}")
        if last:
            stamp(4)
            if P.stamp:
                a("s_waitcnt lgkmcnt(0)")
        for d in range(8):
            a(f"ds_read_b64_tr_b16 {vr(vF + 4 * d + 2 * h, 2)}, v{vVr + d} offset:{slot * 4096}")
        if nxt < len(tiles):
            a("s_waitcnt lgkmcnt(0)")
            if t == TNON:
                a.vmem(f"buffer_load_dwordx4 {vr(vNon, 4)}, off, s[44:47], s87", "non")
            if t == P.twarm and P.warm:
                wp = (" " + P.warmpol) if P.warmpol else ""
                a.vmem(f"buffer_load_dword v{vT + 5}, off, s[36:39], s69{wp}", "warm")
                if P.warm >= 2:
                    a.vmem(f"buffer_load_dword v{vT + 6}, off, s[40:43], s58", "warm")
                if P.warm >= 3:
                    a(f"v_lshlrev_b32 v{vT + 7}, 7, v{vN}")
                    a(f"s_lshl_b32 s67, s{sW}, 11")
                    a(f"s_add_u32 s67, s67, s56")
                    a.vmem(f"buffer_load_dword v{vT + 7}, v{vT + 7}, s[36:39], s67 offen{wp}", "warm")
            issue(nxt)
            nxt += 1
            counted = False
        else:
            counted = True
        if h == 1:
            for d in range(8):
                if counted:
                    a(f"s_waitcnt lgkmcnt({7 - d})")
                c = "0" if s == 0 else vr(vAcc + 4 * d, 4)
                a(f"v_mfma_f32_16x16x32_bf16 {vr(vAcc + 4 * d, 4)}, {vr(vF + 4 * d, 4)}, {vr(vP + 4 * (s & 1), 4)}, {c}")
            if s == 2:
                treecalc()
        else:
            if s == 0:
                pcalc(0)
            if s + 1 < NT // 2:
                pcalc(s + 1)
    assert "non" not in a.vq and TNON + NS < NT - 2
    a("s_mov_b64 exec, s[50:51]")
    a("s_nop 0")
    for d in range(8):
        if d == 7:
            a("s_nop 0")
        a(f"ds_write_b128 v{vOw}, {vr(vAcc + 4 * d, 4)} offset:{64 * d}")
    a("s_mov_b64 exec, -1")
    a("s_waitcnt lgkmcnt(0)")
    a("s_barrier")
    R = vS
    a(f"ds_read_b128 {vr(R, 4)}, v{vMr}")
    for w in range(4):
        a(f"ds_read_b128 {vr(vF + 4 * w, 4)}, v{vOr + w // per} offset:{(w % per) * RING}")
    a(f"ds_read_b128 {vr(R + 4, 4)}, v{vMr} offset:256")
    a("s_waitcnt lgkmcnt(5)")
    a(f"v_max3_f32 v{G2}, v{R}, v{R + 1}, v{R + 2}")
    a(f"v_max_f32 v{G2}, v{G2}, v{R + 3}")
    for w in range(4):
        a(f"v_sub_f32 v{R + w}, v{R + w}, v{G2}")
    for w in range(4):
        a(f"v_exp_f32 v{R + w}, v{R + w}")
    dst = [G0, G0 + 1, G1, G1 + 1]
    a("s_waitcnt lgkmcnt(1)")
    for c in range(4):
        a(f"v_mul_f32 v{dst[c]}, v{R}, v{vF + c}")
    for w in range(1, 4):
        for c in range(4):
            a(f"v_fmac_f32 v{dst[c]}, v{R + w}, v{vF + 4 * w + c}")
    a("s_cmp_lg_u32 s88, 0")
    a("s_cbranch_scc1 L_far")

    def publish(pp):
        a(f"buffer_store_dwordx4 {vr(G0, 4)}, v{vPub}, s[36:39], s68 offen{pp}")
        a(f"buffer_store_dwordx4 {vr(G1, 4)}, v{vPub}, s[36:39], s68 offen offset:128{pp}")
        a("s_waitcnt lgkmcnt(0)")
        a(f"v_mul_f32 v{G2 + 1}, v{R}, v{R + 4}")
        for w in range(1, 4):
            a(f"v_fmac_f32 v{G2 + 1}, v{R + w}, v{R + 4 + w}")
        a(f"v_and_b32 v{G2 + 1}, 0x7fffffff, v{G2 + 1}")
        a(f"v_or_b32 v{G2 + 1}, s88, v{G2 + 1}")
        a("s_mov_b32 exec_lo, 15")
        a("s_mov_b32 exec_hi, 15")
        a(f"buffer_store_dwordx4 {vr(G2, 4)}, v{vMlo}, s[36:39], s69 offen{pp}")
        a("s_mov_b64 exec, -1")

    publish(P.pubpol)
    a.label("L_pubd")
    stamp(5)
    a(f"s_cmp_lg_u32 s{sW}, 0")
    a("s_cbranch_scc1 L_side")
    OA, OB, ML = vF, vF + 16, vAcc
    X = vAcc + 16
    a.label("L_poll")
    for i in range(4):
        so = "s56" if i < 2 else "s52"
        a(f"buffer_load_dwordx4 {vr(OA + 4 * i, 4)}, v{vA}, s[36:39], {so} offen offset:{2048 * (i & 1)}{P.pollpol}")
        a(f"buffer_load_dwordx4 {vr(OB + 4 * i, 4)}, v{vA}, s[36:39], {so} offen offset:{2048 * (i & 1) + 128}{P.pollpol}")
    a(f"buffer_load_dwordx4 {vr(ML, 4)}, v{vB}, s[36:39], s57 offen{P.pollpol}")
    a(f"s_add_u32 s67, s57, 4096")
    a(f"buffer_load_dwordx4 {vr(ML + 4, 4)}, v{vB}, s[36:39], s67 offen{P.pollpol}")
    a(f"buffer_load_dwordx4 {vr(ML + 8, 4)}, v{vB}, s[36:39], s53 offen{P.pollpol}")
    a(f"s_add_u32 s67, s53, 4096")
    a(f"buffer_load_dwordx4 {vr(ML + 12, 4)}, v{vB}, s[36:39], s67 offen{P.pollpol}")
    a("s_add_u32 s59, s59, 1")
    a("s_waitcnt vmcnt(0)")
    for r in [OA + 4 * i for i in range(4)] + [OB + 4 * i for i in range(4)] + [ML + 4 * i for i in range(4)]:
        a(f"v_cmpx_eq_u64 vcc, s[54:55], {vr(r + 2, 2)}")
    a("s_nop 4")
    a("s_mov_b64 exec, -1")
    a("s_cmp_eq_u64 vcc, -1")
    a("s_cbranch_scc1 L_got")
    a(f"s_cmp_lt_u32 s59, {P.spin}")
    a("s_cbranch_scc1 L_poll")
    a.label("L_got")
    M, T = X, X + 1
    a(f"v_max3_f32 v{M}, v{ML}, v{ML + 4}, v{ML + 8}")
    a(f"v_max3_f32 v{M}, v{M}, v{ML + 12}, s64")
    xlane(a, "v_max_f32", [M], [T], [8, 16, 32])
    Wt = X + 2
    for i in range(4):
        a(f"v_sub_f32 v{Wt + i}, v{ML + 4 * i}, v{M}")
    a(f"v_sub_f32 v{Wt + 4}, s64, v{M}")
    for i in range(5):
        a(f"v_exp_f32 v{Wt + i}, v{Wt + i}")
    Rr = X + 8
    C = vS + 8
    src = lambda i, c: (OA if c < 2 else OB) + 4 * i + (c & 1)
    for c in range(4):
        a(f"v_mul_f32 v{Rr + c}, v{Wt}, v{src(0, c)}")
    a(f"v_mul_f32 v{Rr + 4}, v{Wt}, abs(v{ML + 1})")
    for i in range(1, 4):
        for c in range(4):
            a(f"v_fmac_f32 v{Rr + c}, v{Wt + i}, v{src(i, c)}")
        a(f"v_fma_f32 v{Rr + 4}, v{Wt + i}, abs(v{ML + 4 * i + 1}), v{Rr + 4}")
    xlane(a, "v_add_f32", [Rr + 4] + [Rr + c for c in range(4)], [C + c for c in range(5)], [8, 16, 32])
    a(f"v_add_f32 v{Rr + 4}, v{Rr + 4}, v{Wt + 4}")
    a(f"v_rcp_f32 v{Rr + 4}, v{Rr + 4}")
    for c in range(4):
        a(f"v_fmac_f32 v{Rr + c}, v{Wt + 4}, v{vVT + c}")
    for c in range(4):
        a(f"v_mul_f32 v{Rr + c}, v{Rr + c}, v{Rr + 4}")
    a(f"v_cvt_pk_bf16_f32 v{C}, v{Rr}, v{Rr + 1}")
    a(f"v_cvt_pk_bf16_f32 v{C + 1}, v{Rr + 2}, v{Rr + 3}")
    a("s_mov_b64 exec, 0xff")
    a(f"buffer_store_dwordx2 {vr(C, 2)}, v{vO}, s[40:43], s58 offen{P.outpol}")
    a("s_mov_b64 exec, -1")
    a(f"v_or3_b32 v{X}, v{ML + 1}, v{ML + 5}, v{ML + 9}")
    a(f"v_or_b32 v{X}, v{X}, v{ML + 13}")
    a(f"v_cmp_gt_i32 vcc, 0, v{X}")
    a("s_barrier")
    a("s_cbranch_vccz " + ("L_fin" if P.stamp else "L_end"))
    a("s_waitcnt vmcnt(0)")
    a("buffer_wbl2 sc1")
    a("s_waitcnt vmcnt(0)")
    a("s_branch " + ("L_fin" if P.stamp else "L_end"))
    a.label("L_far")
    publish(" sc1")
    a("s_branch L_pubd")
    a.label("L_side")
    a("s_waitcnt vmcnt(0)")
    a("s_barrier")
    a.label("L_fin")
    if P.stamp:
        a("s_mov_b64 exec, -1")
        a("s_waitcnt vmcnt(0)")
        stamp(6)
        a(f"s_getreg_b32 s90, hwreg(HW_REG_XCC_ID)")
        a(f"s_getreg_b32 s91, hwreg(HW_REG_HW_ID)")
        a("s_waitcnt lgkmcnt(0)")
        vals = [f"s{72 + 2 * i}" for i in range(7)] + ["0", "s90", "s91", "s59", "0"]
        for i, s in enumerate(vals):
            a(f"v_mov_b32 v{vAcc + i}, {s}")
        a(f"s_lshl_b32 s56, s2, 2")
        a(f"s_add_u32 s56, s56, s{sW}")
        a(f"s_lshl_b32 s56, s56, 6")
        a(f"s_add_u32 s56, s56, {WS_STAMP}")
        if P.stamp >= 2:
            a(f"s_sub_u32 s57, s56, {WS_STAMP}")
            a(f"s_lshl_b32 s57, s57, 2")
            a(f"s_add_u32 s57, s57, {WS_STAMP * 2}")
            a(f"v_lshlrev_b32 v{vT}, 2, v{vLane}")
            a(f"buffer_store_dword v{vFine}, v{vT}, s[36:39], s57 offen")
            a.comment("FINE " + " ".join(fine))
        a("s_mov_b64 exec, 1")
        for i in range(3):
            a(f"buffer_store_dwordx4 {vr(vAcc + 4 * i, 4)}, off, s[36:39], s56 offset:{16 * i}")
    a.label("L_end")
    a("s_endpgm")
    out = HEADER + f"; @launch grid=(256,1,1) block=(256,1,1) lds={LDS}\n"
    out += '.amdgcn_target "amdgcn-amd-amdhsa--gfx950"\n.text\n' + a.text()
    out += '.section .rodata,"a"\n' + kd(kname, a.nv, 96)
    return out


def main():
    ap = argparse.ArgumentParser()
    ap.add_argument("--NS", type=int, default=4)
    ap.add_argument("--pol", default="nt")
    ap.add_argument("--outpol", default="")
    ap.add_argument("--map", default="lo")
    ap.add_argument("--rot", type=int, default=0)
    ap.add_argument("--qpos", type=int, default=1)
    ap.add_argument("--ttree", type=int, default=4)
    ap.add_argument("--tnon", type=int, default=2)
    ap.add_argument("--warm", type=int, default=0)
    ap.add_argument("--twarm", type=int, default=4)
    ap.add_argument("--warmpol", default="")
    ap.add_argument("--pubpol", default="")
    ap.add_argument("--pollpol", default="sc1")
    ap.add_argument("--stamp", type=int, default=0)
    ap.add_argument("--spin", type=int, default=200000)
    ap.add_argument("-o", default="-")
    P = ap.parse_args()
    if P.outpol:
        P.outpol = " " + P.outpol
    P.pubpol = (" " + P.pubpol) if P.pubpol else ""
    P.pollpol = (" " + P.pollpol) if P.pollpol else ""
    s = gen(P)
    if P.o == "-":
        sys.stdout.write(s)
    else:
        open(P.o, "w").write(s)


if __name__ == "__main__":
    main()
```

```python
import sys, argparse, math
from gen import Asm, vr, f32bits, srd, kd, HEADER, NAME, WS_STAMP

LOG2E = math.log2(math.e)
WS_ML = 1 << 20
DPP = "row_mask:0xf bank_mask:0xf"


def swapred(a, op, regs, tmps, st):
    for r, t in zip(regs, tmps):
        a(f"v_mov_b32 v{t}, v{r}")
    if len(regs) < 3:
        a(f"s_nop {2 - len(regs)}")
    for r, t in zip(regs, tmps):
        a(f"v_permlane{st}_swap_b32 v{r}, v{t}")
    for r, t in zip(regs, tmps):
        a(f"{op} v{r}, v{r}, v{t}")


def gen(P):
    W, NS = 4, P.NS
    NT = 16
    RING = NS * 4096
    SCR = W * RING
    LDS = SCR + 768
    pol = (" " + P.pol) if P.pol else ""
    CSC = (128 ** -0.5) * LOG2E
    a = Asm()
    kname = NAME + "_kernel"
    a.lines.append(f".globl {kname}\n.p2align 8\n.type {kname},@function")
    a.label(kname)
    vTid = a.vreg(); vLane = a.vreg(); vG = a.vreg(); vN = a.vreg()
    vT = a.vreg(8, 4)
    vKs = a.vreg(4); vVs = a.vreg(2); vKr = a.vreg(4); vVr = a.vreg(8)
    vL = a.vreg(2)
    vNon = a.vreg(4, 4)
    vPub = a.vreg(); vM = a.vreg(); vMlo = a.vreg()
    vOw = a.vreg(); vOr = a.vreg(4); vMr = a.vreg(); vMw = a.vreg(); vFine = a.vreg()
    vA = a.vreg(); vB = a.vreg(); vO = a.vreg()
    vVT = a.vreg(6, 2)
    vQ = a.vreg(16, 4)
    vF = a.vreg(32, 4)
    vAcc = a.vreg(32, 4)
    vP = a.vreg(8, 4)
    vS = a.vreg(64, 4)
    sW, sLds, sGrp, sSp = 22, 23, 60, 61
    sBase, sOff, sMask, sC = 62, 63, 65, 66
    fine = []
    END = "L_fin" if P.stamp else "L_end"

    def stamp(i):
        if P.stamp:
            a(f"s_memrealtime s[{72 + 2 * i}:{73 + 2 * i}]")

    def fstamp(name):
        if P.stamp >= 2:
            a("s_memrealtime s[92:93]")
            a("s_waitcnt lgkmcnt(0)")
            a(f"v_writelane_b32 v{vFine}, s92, {len(fine)}")
            fine.append(name)

    a("s_cmp_ge_u32 s2, 256")
    a("s_cbranch_scc1 L_end")
    a("s_load_dwordx16 s[4:19], s[0:1], 0")
    a("s_load_dwordx2 s[20:21], s[0:1], 64")
    a("s_memrealtime s[54:55]")
    stamp(0)
    a(f"v_lshrrev_b32 v{vT}, 6, v0")
    a(f"v_and_b32 v{vLane}, 63, v0")
    a(f"v_readfirstlane_b32 s{sW}, v{vT}")
    a(f"v_lshrrev_b32 v{vG}, 4, v{vLane}")
    a(f"v_and_b32 v{vN}, 15, v0")
    if P.map == "lo":
        a(f"s_and_b32 s{sGrp}, s2, 7")
        a(f"s_lshr_b32 s{sSp}, s2, 3")
    else:
        a(f"s_lshr_b32 s{sGrp}, s2, 5")
        a(f"s_and_b32 s{sSp}, s2, 31")
    a(f"v_lshlrev_b32 v{vT + 1}, 8, v{vG}")
    a(f"v_xor_b32 v{vT + 2}, v{vN}, v{vG}")
    for i in range(4):
        if i:
            a(f"v_xor_b32 v{vT + 3}, {4 * i}, v{vT + 2}")
            a(f"v_lshl_add_u32 v{vKs + i}, v{vT + 3}, 4, v{vT + 1}")
        else:
            a(f"v_lshl_add_u32 v{vKs + i}, v{vT + 2}, 4, v{vT + 1}")
    a(f"v_and_b32 v{vT + 4}, 7, v{vN}")
    a(f"v_lshlrev_b32 v{vT + 4}, 8, v{vT + 4}")
    a(f"v_lshl_add_u32 v{vT + 4}, v{vG}, 4, v{vT + 4}")
    a(f"s_lshl_b32 s71, s{sGrp}, 11")
    a(f"s_mul_i32 s{sLds}, s{sW}, {RING}")
    if P.map == "lo":
        a(f"s_lshl_b32 s67, s{sSp}, 18")
    else:
        a(f"s_add_u32 s67, s{sGrp}, s{sSp}")
        a(f"s_and_b32 s67, s67, 31")
        a(f"s_lshl_b32 s67, s67, 18")
    a(f"s_lshl_b32 s{sBase}, s{sGrp}, 23")
    a(f"s_add_u32 s{sBase}, s{sBase}, s67")
    a(f"s_lshl_b32 s67, s{sW}, 12")
    a(f"s_add_u32 s{sBase}, s{sBase}, s67")
    a("s_mov_b32 s26, 0x4000000")
    a("s_mov_b32 s27, 0x00020000")
    a(f"s_mov_b32 m0, s{sLds}")
    a("s_waitcnt lgkmcnt(0)")
    a("s_mov_b32 s24, s6")
    a("s_and_b32 s25, s7, 0xffff")
    stride = 16384
    tiles = [("k", t) for t in range(NT)] + [("v", t) for t in range(NT)]

    def issue(idx, first=False):
        kind, t = tiles[idx]
        slot = idx % NS
        if first:
            so = sBase
        else:
            a(f"s_add_u32 m0, s{sLds}, {slot * 4096}")
            a(f"s_add_u32 s{sOff}, s{sBase}, {t * stride}")
            so = sOff
        for i in range(4):
            if kind == "k":
                a.vmem(f"buffer_load_dwordx4 v{vKs + i}, s[24:27], s{so} offen offset:{1024 * i}{pol} lds", ("t", idx))
            else:
                a.vmem(f"buffer_load_dwordx4 v{vVs + (i & 1)}, s[28:31], s{so} offen offset:{1024 * i}{pol} lds", ("t", idx))

    def qload():
        srd(a, 32, 4, 16384)
        for j in range(4):
            a.vmem(f"buffer_load_dwordx4 {vr(vQ + 4 * j, 4)}, v{vT + 4}, s[32:35], s71 offen offset:{64 * j}", "q")

    for idx in range(NS):
        if idx == P.qpos:
            qload()
        issue(idx, first=(idx == 0))
    if P.qpos >= NS:
        qload()
    srd(a, 44, 18, 256)
    a("s_getreg_b32 s86, hwreg(HW_REG_XCC_ID, 0, 4)")
    a(f"s_lshl_b32 s87, s{sGrp}, 4")
    a("s_add_u32 s86, s86, 1")
    a(f"s_or_b32 s67, s{sSp}, s{sW}")
    a("s_cbranch_scc1 L_nonon")
    a(f"v_mov_b32 v{vNon}, s54")
    a(f"v_mov_b32 v{vNon + 1}, s55")
    a(f"v_mov_b32 v{vNon + 2}, s86")
    a(f"v_mov_b32 v{vNon + 3}, 0")
    a("s_mov_b64 exec, 1")
    a(f"buffer_store_dwordx4 {vr(vNon, 4)}, off, s[44:47], s87 sc1")
    a("s_mov_b64 exec, -1")
    a.label("L_nonon")
    fstamp("issued")
    a(f"v_lshlrev_b32 v{vT + 2}, 1, v{vG}")
    a(f"v_xor_b32 v{vT + 2}, v{vT + 2}, v{vN}")
    a(f"v_lshl_add_u32 v{vVs}, v{vT + 2}, 4, v{vT + 1}")
    a(f"v_xor_b32 v{vT + 2}, 8, v{vT + 2}")
    a(f"v_lshl_add_u32 v{vVs + 1}, v{vT + 2}, 4, v{vT + 1}")
    srd(a, 28, 8, 1 << 26)
    srd(a, 36, 20, 1 << 28)
    srd(a, 40, 16, 16384)
    srd(a, 48, 10, 2048)
    srd(a, 32, 12, 2048)
    a("s_load_dword s65, s[14:15], 0")
    a(f"v_lshrrev_b32 v{vT + 6}, 3, v{vTid}")
    a(f"v_lshlrev_b32 v{vT + 6}, 12, v{vT + 6}")
    a(f"v_and_b32 v{vT + 7}, 7, v{vTid}")
    a(f"v_lshl_add_u32 v{vPub}, v{vT + 7}, 4, v{vT + 6}")
    a(f"s_lshl_b32 s68, s{sGrp}, 17")
    a(f"s_lshl_b32 s69, s{sSp}, 7")
    a(f"s_add_u32 s68, s68, s69")
    a(f"v_lshrrev_b32 v{vT + 6}, 5, v{vLane}")
    a(f"v_lshlrev_b32 v{vT + 6}, 6, v{vT + 6}")
    a(f"v_and_b32 v{vT + 7}, 3, v{vLane}")
    a(f"v_lshl_add_u32 v{vMlo}, v{vT + 7}, 4, v{vT + 6}")
    a(f"s_lshl_b32 s69, s{sGrp}, 5")
    a(f"s_add_u32 s69, s69, s{sSp}")
    a(f"s_lshl_b32 s69, s69, 2")
    a(f"s_add_u32 s69, s69, s{sW}")
    a(f"s_lshl_b32 s69, s69, 7")
    a(f"s_add_u32 s69, s69, {WS_ML}")
    for j in range(4):
        a(f"v_or_b32 v{vT + 2}, {4 * j}, v{vG}")
        a(f"v_xor_b32 v{vT + 2}, v{vT + 2}, v{vN}")
        a(f"v_lshlrev_b32 v{vT + 2}, 4, v{vT + 2}")
        a(f"v_lshl_add_u32 v{vT + 2}, v{vN}, 8, v{vT + 2}")
        a(f"v_add_u32 v{vKr + j}, s{sLds}, v{vT + 2}")
    a(f"v_lshrrev_b32 v{vT + 2}, 2, v{vN}")
    a(f"v_lshl_add_u32 v{vT + 2}, v{vG}, 2, v{vT + 2}")
    a(f"v_and_b32 v{vT + 3}, 3, v{vN}")
    a(f"v_lshlrev_b32 v{vT + 3}, 3, v{vT + 3}")
    a(f"v_lshl_add_u32 v{vT + 3}, v{vT + 2}, 8, v{vT + 3}")
    a(f"v_add_u32 v{vT + 3}, s{sLds}, v{vT + 3}")
    a(f"v_and_b32 v{vT + 2}, 7, v{vT + 2}")
    for t in range(8):
        a(f"v_xor_b32 v{vT + 4}, {t}, v{vT + 2}")
        a(f"v_lshl_add_u32 v{vVr + t}, v{vT + 4}, 5, v{vT + 3}")
    a(f"v_and_b32 v{vT + 2}, 7, v{vN}")
    a(f"v_mul_u32_u24 v{vOw}, 528, v{vT + 2}")
    a(f"v_lshl_add_u32 v{vOw}, v{vG}, 4, v{vOw}")
    a(f"v_add_u32 v{vOw}, s{sLds}, v{vOw}")
    a(f"v_lshrrev_b32 v{vT + 1}, 5, v{vTid}")
    a(f"v_mul_u32_u24 v{vOr}, 528, v{vT + 1}")
    a(f"v_and_b32 v{vT + 2}, 31, v{vTid}")
    a(f"v_lshl_add_u32 v{vOr}, v{vT + 2}, 4, v{vOr}")
    per = max(1, 65536 // RING)
    nreg = (W + per - 1) // per
    for r in range(1, nreg):
        a(f"v_add_u32 v{vOr + r}, {r * per * RING}, v{vOr}")
    a(f"v_lshlrev_b32 v{vMr}, 4, v{vT + 1}")
    a(f"v_add_u32 v{vMr}, {SCR}, v{vMr}")
    a(f"s_lshl_b32 s67, s{sW}, 2")
    a(f"s_add_u32 s67, s67, {SCR}")
    a(f"v_lshlrev_b32 v{vMw}, 4, v{vN}")
    a(f"v_add_u32 v{vMw}, s67, v{vMw}")
    a(f"v_lshlrev_b32 v{vA}, 4, v{vLane}")
    a(f"v_lshrrev_b32 v{vT + 6}, 3, v{vLane}")
    a(f"v_and_b32 v{vT + 7}, 3, v{vLane}")
    a(f"v_lshl_add_u32 v{vT + 6}, v{vT + 7}, 3, v{vT + 6}")
    a(f"v_lshlrev_b32 v{vB}, 9, v{vT + 6}")
    a(f"v_and_b32 v{vT + 7}, 7, v{vLane}")
    a(f"v_lshlrev_b32 v{vO}, 3, v{vT + 7}")
    a(f"s_lshl_b32 s56, s{sGrp}, 17")
    a(f"s_lshl_b32 s57, s{sSp}, 12")
    a(f"s_add_u32 s56, s56, s57")
    a(f"s_lshl_b32 s57, s{sGrp}, 14")
    a(f"s_lshl_b32 s58, s{sSp}, 4")
    a(f"s_add_u32 s57, s57, s58")
    a(f"s_add_u32 s57, s57, {WS_ML}")
    a(f"s_lshl_b32 s58, s{sGrp}, 11")
    a(f"s_lshl_b32 s67, s{sSp}, 6")
    a(f"s_add_u32 s58, s58, s67")
    a(f"s_mov_b32 s{sC}, {f32bits(CSC)}")
    a(f"v_mov_b32 v{vM}, 0xff800000")
    a("s_mov_b32 s59, 0")

    nxt = NS
    for t in range(NT):
        slot = t % NS
        a.wait_vm(("t", t))
        fstamp(f"k{t}")
        if t == 0:
            stamp(1)
        for j in range(4):
            a(f"ds_read_b128 {vr(vF + 4 * j, 4)}, v{vKr + j} offset:{slot * 4096}")
        a("s_waitcnt lgkmcnt(0)")
        if t == P.ttree:
            a(f"s_cmp_lg_u32 s{sW}, 0")
            a("s_cbranch_scc1 L_notree0")
            a(f"s_lshl_b32 s67, s{sGrp}, 8")
            a(f"v_lshlrev_b32 v{vT}, 2, v{vLane}")
            a(f"s_mov_b32 m0, {SCR + 512}")
            a(f"s_and_b32 s70, s{sSp}, 3")
            a(f"buffer_load_dword v{vT}, s[48:51], s67 offen lds")
            a(f"s_lshl_b32 s70, s70, 6")
            a(f"s_add_u32 s67, s67, s70")
            a(f"buffer_load_dwordx2 {vr(vVT + 4, 2)}, v{vO}, s[32:35], s67 offen")
            a.label("L_notree0")
        if t == P.vwarm:
            a.vmem(f"buffer_load_dword v{vT + 5}, off, s[28:31], s{sBase}", "vw")
        issue(nxt)
        nxt += 1
        if t >= 1:
            b = vS + 4 * (t - 1)
            a(f"v_max3_f32 v{vM}, v{vM}, v{b}, v{b + 1}")
            a(f"v_max3_f32 v{vM}, v{vM}, v{b + 2}, v{b + 3}")
        a.wait_vm("q")
        for j in range(4):
            c = "0" if j == 0 else vr(vS + 4 * t, 4)
            a(f"v_mfma_f32_16x16x32_bf16 {vr(vS + 4 * t, 4)}, {vr(vF + 4 * j, 4)}, {vr(vQ + 4 * j, 4)}, {c}")
    assert P.ttree + NS < NT
    stamp(2)
    a(f"v_mov_b32 v{vL}, 0")
    a(f"v_mov_b32 v{vL + 1}, 0")
    a("s_nop 5")
    b = vS + 4 * (NT - 1)
    a(f"v_max3_f32 v{vM}, v{vM}, v{b}, v{b + 1}")
    a(f"v_max3_f32 v{vM}, v{vM}, v{b + 2}, v{b + 3}")
    swapred(a, "v_max_f32", [vM], [vT], 16)
    swapred(a, "v_max_f32", [vM], [vT], 32)
    a(f"v_mul_f32 v{vM}, s{sC}, v{vM}")
    a(f"ds_write_b32 v{vMw}, v{vM}")

    def pcalc(s):
        b = vS + 8 * s
        p = vP + 4 * (s & 1)
        for i in range(8):
            a(f"v_fma_f32 v{b + i}, v{b + i}, s{sC}, -v{vM}")
        for i in range(8):
            a(f"v_exp_f32 v{b + i}, v{b + i}")
        a("s_nop 0")
        for i in range(4):
            a(f"v_add_f32 v{vL}, v{vL}, v{b + 2 * i}")
            a(f"v_add_f32 v{vL + 1}, v{vL + 1}, v{b + 2 * i + 1}")
            a(f"v_cvt_pk_bf16_f32 v{p + i}, v{b + 2 * i}, v{b + 2 * i + 1}")

    def treecalc():
        KT = vS
        a(f"s_cmp_lg_u32 s{sW}, 0")
        a("s_cbranch_scc1 L_notree1")
        a(f"v_lshlrev_b32 v{vT}, 4, v{vG}")
        a(f"v_add_u32 v{vT}, {SCR + 512}, v{vT}")
        for j in range(4):
            a(f"ds_read_b128 {vr(KT + 4 * j, 4)}, v{vT} offset:{64 * j}")
        a("s_waitcnt lgkmcnt(0)")
        for j in range(4):
            c = "0" if j == 0 else vr(KT + 16, 4)
            a(f"v_mfma_f32_16x16x32_bf16 {vr(KT + 16, 4)}, {vr(KT + 4 * j, 4)}, {vr(vQ + 4 * j, 4)}, {c}")
        a(f"s_lshr_b32 s67, s{sGrp}, 2")
        a(f"s_lshl_b32 s67, s67, 4")
        a(f"s_lshr_b32 s{sMask}, s{sMask}, s67")
        a(f"s_lshl_b32 s{sMask}, s{sMask}, 16")
        a(f"s_lshr_b32 s70, s{sSp}, 2")
        a(f"v_mov_b32 v{vT}, s{sMask}")
        a(f"v_sub_f32 v{vT}, 1.0, v{vT}")
        a(f"v_mul_f32 v{vT}, {f32bits(-1e9 * LOG2E)}, v{vT}")
        a(f"v_lshlrev_b32 v{vVT}, 16, v{vVT + 4}")
        a(f"v_and_b32 v{vVT + 1}, 0xffff0000, v{vVT + 4}")
        a(f"v_lshlrev_b32 v{vVT + 2}, 16, v{vVT + 5}")
        a(f"v_and_b32 v{vVT + 3}, 0xffff0000, v{vVT + 5}")
        a(f"v_fma_f32 v{vT}, v{KT + 16}, s{sC}, v{vT}")
        a("s_nop 0")
        a(f"v_readlane_b32 s64, v{vT}, s70")
        a.label("L_notree1")

    R = vS
    G0, G2 = vS + 8, vS + 12
    ML = vS + 16
    stamp(3)
    TB = P.tbar
    assert TB >= NT - NS - 1 and TB % 2 == 0
    for t in range(NT):
        idx = NT + t
        slot = idx % NS
        h = t & 1
        s = t // 2
        last = t == NT - 1
        if t == TB:
            for s2 in range(s + 1, NT // 2):
                assert False, "all P must be done"
            a(f"v_add_f32 v{vL}, v{vL}, v{vL + 1}")
            swapred(a, "v_add_f32", [vL], [vT], 16)
            swapred(a, "v_add_f32", [vL], [vT], 32)
            a(f"ds_write_b32 v{vMw}, v{vL} offset:256")
            a(f"v_cmp_eq_u32 vcc, 0, v{vNon + 2}")
            a("s_cbranch_vccnz L_non")
            a.label("L_nonok")
            a(f"v_readfirstlane_b32 s54, v{vNon}")
            a(f"v_readfirstlane_b32 s55, v{vNon + 1}")
            a(f"v_readfirstlane_b32 s89, v{vNon + 2}")
            a(f"v_mov_b32 v{G0 + 3}, v{vNon}")
            a(f"v_mov_b32 v{G2 + 2}, v{vNon}")
            a(f"v_mov_b32 v{G2 + 3}, v{vNon + 1}")
            a("s_mov_b32 s50, 0x07060501")
            a("s_mov_b32 s51, 0x07060502")
            a("s_mov_b32 s52, 0x07060503")
            a("s_mov_b32 s48, 0x0c04000c")
            a("s_mov_b32 s49, 0x04020100")
            a("s_cmp_eq_u32 s89, s86")
            a("s_cselect_b32 s88, 0, 0x80000000")
            a("s_mov_b32 s59, 0")
            a("s_waitcnt lgkmcnt(0)")
            a("s_barrier")
            a(f"ds_read_b128 {vr(R, 4)}, v{vMr}")
            a(f"ds_read_b128 {vr(R + 4, 4)}, v{vMr} offset:256")
            a("s_waitcnt lgkmcnt(1)")
            a(f"v_max3_f32 v{G2}, v{R}, v{R + 1}, v{R + 2}")
            a(f"v_max_f32 v{G2}, v{G2}, v{R + 3}")
            for w in range(4):
                a(f"v_sub_f32 v{R + w}, v{R + w}, v{G2}")
            for w in range(4):
                a(f"v_exp_f32 v{R + w}, v{R + w}")
            a("s_waitcnt lgkmcnt(0)")
            a(f"v_mul_f32 v{G2 + 1}, v{R}, v{R + 4}")
            for w in range(1, 4):
                a(f"v_fmac_f32 v{G2 + 1}, v{R + w}, v{R + 4 + w}")
            a(f"v_and_b32 v{G2 + 1}, 0x7fffffff, v{G2 + 1}")
            a(f"v_or_b32 v{G2 + 1}, s88, v{G2 + 1}")
            a("s_mov_b32 exec_lo, 15")
            a("s_mov_b32 exec_hi, 15")
            a("s_cmp_lg_u32 s88, 0")
            a("s_cbranch_scc1 L_far1")
            a.vmem(f"buffer_store_dwordx4 {vr(G2, 4)}, v{vMlo}, s[36:39], s69 offen{P.pubpol}", "mlst")
            a.label("L_back1")
            a("s_mov_b64 exec, -1")
        a.wait_vm(("t", idx))
        fstamp(f"v{t}")
        if last:
            stamp(4)
            if P.stamp:
                a("s_waitcnt lgkmcnt(0)")
        for d in range(8):
            a(f"ds_read_b64_tr_b16 {vr(vF + 4 * d + 2 * h, 2)}, v{vVr + d} offset:{slot * 4096}")
        if last:
            a(f"s_cmp_lg_u32 s{sW}, 0")
            a("s_cbranch_scc1 L_noml")
            a(f"buffer_load_dwordx4 {vr(ML, 4)}, v{vB}, s[36:39], s57 offen sc1")
            a.label("L_noml")
        if nxt < len(tiles):
            a("s_waitcnt lgkmcnt(0)")
            if t == P.tnon:
                a.vmem(f"buffer_load_dwordx4 {vr(vNon, 4)}, off, s[44:47], s87", "non")
            if t == P.twarm and P.warm:
                a.vmem(f"buffer_load_dword v{vT + 5}, off, s[36:39], s69", "warm")
                if P.warm >= 2:
                    a.vmem(f"buffer_load_dword v{vT + 6}, off, s[40:43], s58", "warm")
            issue(nxt)
            nxt += 1
            counted = False
        else:
            counted = True
        if h == 1:
            for d in range(8):
                if counted:
                    a(f"s_waitcnt lgkmcnt({7 - d + (max(0, d - 2) if last else 0)})")
                c = "0" if s == 0 else vr(vAcc + 4 * d, 4)
                a(f"v_mfma_f32_16x16x32_bf16 {vr(vAcc + 4 * d, 4)}, {vr(vF + 4 * d, 4)}, {vr(vP + 4 * (s & 1), 4)}, {c}")
                if last and d >= 2:
                    if d == 2:
                        a("s_nop 3")
                    else:
                        a("s_nop 1")
                    a(f"ds_write_b128 v{vOw}, {vr(vAcc + 4 * (d - 2), 4)} offset:{64 * (d - 2)}")
            if s + 1 < NT // 2:
                pcalc(s + 1)
            if s == 2:
                treecalc()
        elif s == 0:
            pcalc(0)
    assert "non" not in a.vq
    a("s_nop 2")
    a(f"ds_write_b128 v{vOw}, {vr(vAcc + 24, 4)} offset:{64 * 6}")
    a("s_nop 2")
    a(f"ds_write_b128 v{vOw}, {vr(vAcc + 28, 4)} offset:{64 * 7}")
    a("s_waitcnt lgkmcnt(0)")
    a("s_barrier")
    for w in range(4):
        a(f"ds_read_b128 {vr(vF + 4 * w, 4)}, v{vOr + w // per} offset:{(w % per) * RING}")
    a("s_waitcnt lgkmcnt(3)")
    for c in range(4):
        a(f"v_mul_f32 v{vF + c}, v{R}, v{vF + c}")
    for w in range(1, 4):
        a(f"s_waitcnt lgkmcnt({3 - w})")
        for c in range(4):
            a(f"v_fmac_f32 v{vF + c}, v{R + w}, v{vF + 4 * w + c}")
    for c in range(3):
        a(f"v_perm_b32 v{G0 + c}, v{vF + c}, v{vF + 3}, s{50 + c}")
    a("s_cmp_lg_u32 s88, 0")
    a("s_cbranch_scc1 L_far2")
    a(f"buffer_store_dwordx4 {vr(G0, 4)}, v{vPub}, s[36:39], s68 offen{P.pubpol}")
    a.label("L_back2")
    stamp(5)
    a(f"s_cmp_lg_u32 s{sW}, 0")
    a("s_cbranch_scc1 L_side")
    O = vAcc
    X = vAcc + 16

    def osweep():
        for i in range(4):
            a(f"buffer_load_dwordx4 {vr(O + 4 * i, 4)}, v{vA}, s[36:39], s56 offen offset:{1024 * i} sc1")

    osweep()
    a("s_waitcnt vmcnt(5)")
    a(f"v_cmp_ne_u64 vcc, s[54:55], {vr(ML + 2, 2)}")
    a("s_cbranch_vccnz L_mlpoll")
    a.label("L_mlok")
    M, T, Wt, Wx, Lr = X, X + 1, X + 2, X + 3, X + 4
    a(f"v_max_f32 v{M}, s64, v{ML}")
    for q in ("quad_perm:[1,0,3,2]", "quad_perm:[2,3,0,1]", "row_ror:8"):
        a("s_nop 1")
        a(f"v_max_f32_dpp v{M}, v{M}, v{M} {q} {DPP}")
    swapred(a, "v_max_f32", [M], [T], 16)
    swapred(a, "v_max_f32", [M], [T], 32)
    a(f"v_sub_f32 v{Wt}, v{ML}, v{M}")
    a(f"v_sub_f32 v{Wx}, s64, v{M}")
    a(f"v_exp_f32 v{Wt}, v{Wt}")
    a(f"v_exp_f32 v{Wx}, v{Wx}")
    a(f"v_cmp_gt_i32 s[90:91], 0, v{ML + 1}")
    a(f"v_mul_f32 v{Lr}, v{Wt}, abs(v{ML + 1})")
    for q in ("quad_perm:[1,0,3,2]", "quad_perm:[2,3,0,1]", "row_ror:8"):
        a("s_nop 1")
        a(f"v_add_f32_dpp v{Lr}, v{Lr}, v{Lr} {q} {DPP}")
    swapred(a, "v_add_f32", [Lr], [T], 16)
    swapred(a, "v_add_f32", [Lr], [T], 32)
    a(f"v_add_f32 v{Lr}, v{Lr}, v{Wx}")
    a(f"v_rcp_f32 v{Lr}, v{Lr}")
    a("s_nop 0")
    a(f"v_mul_f32 v{Wt}, v{Wt}, v{Lr}")
    a(f"v_mul_f32 v{Wx}, v{Wx}, v{Lr}")
    for c in range(4):
        a(f"v_mul_f32 v{vVT + c}, v{Wx}, v{vVT + c}")
    a.label("L_opoll")
    a("s_waitcnt vmcnt(0)")
    for i in range(4):
        a(f"v_cmp_ne_u32 s[{24 + 2 * i}:{25 + 2 * i}], s54, v{O + 4 * i + 3}")
    Rr = X + 8
    C = vF
    for i in range(4):
        a(f"v_perm_b32 v{C + i}, v{O + 4 * i + 1}, v{O + 4 * i}, s48")
    a("s_or_b64 s[24:25], s[24:25], s[26:27]")
    a("s_or_b64 s[28:29], s[28:29], s[30:31]")
    a("s_or_b64 s[24:25], s[24:25], s[28:29]")
    a("s_cbranch_scc1 L_oagain")
    a.label("L_ook")
    for i in range(4):
        a(f"v_perm_b32 v{O + 4 * i + 3}, v{O + 4 * i + 2}, v{C + i}, s49")
    for i in range(4):
        for c in range(4):
            op = "v_mul_f32_dpp" if i == 0 else "v_fmac_f32_dpp"
            a(f"{op} v{Rr + c}, v{Wt}, v{O + 4 * i + c} quad_perm:[{i},{i},{i},{i}] {DPP}")
    for c in range(4):
        a(f"v_add_f32_dpp v{Rr + c}, v{Rr + c}, v{Rr + c} row_ror:8 {DPP}")
    swapred(a, "v_add_f32", [Rr + c for c in range(4)], [C + c for c in range(4)], 16)
    swapred(a, "v_add_f32", [Rr + c for c in range(4)], [C + c for c in range(4)], 32)
    for c in range(4):
        a(f"v_add_f32 v{Rr + c}, v{Rr + c}, v{vVT + c}")
    a(f"v_cvt_pk_bf16_f32 v{C}, v{Rr}, v{Rr + 1}")
    a(f"v_cvt_pk_bf16_f32 v{C + 1}, v{Rr + 2}, v{Rr + 3}")
    a("s_mov_b64 exec, 0xff")
    a(f"buffer_store_dwordx2 {vr(C, 2)}, v{vO}, s[40:43], s58 offen{P.outpol}")
    a("s_barrier")
    a("s_cmp_eq_u64 s[90:91], 0")
    a(f"s_cbranch_scc1 {END}")
    a("s_waitcnt vmcnt(0)")
    a("buffer_wbl2 sc1")
    a("s_waitcnt vmcnt(0)")
    a(f"s_branch {END}")
    a.label("L_oagain")
    osweep()
    a("s_add_u32 s59, s59, 1")
    a(f"s_cmp_lt_u32 s59, {P.spin}")
    a("s_cbranch_scc1 L_opoll")
    a("s_waitcnt vmcnt(0)")
    a("s_branch L_ook")
    a.label("L_mlpoll")
    a(f"buffer_load_dwordx4 {vr(ML, 4)}, v{vB}, s[36:39], s57 offen sc1")
    a("s_add_u32 s59, s59, 1")
    a("s_waitcnt vmcnt(0)")
    a(f"v_cmp_ne_u64 vcc, s[54:55], {vr(ML + 2, 2)}")
    a(f"s_cmp_lt_u32 s59, {P.spin}")
    a("s_cselect_b64 vcc, vcc, 0")
    a("s_nop 0")
    a("s_cbranch_vccnz L_mlpoll")
    osweep()
    a("s_branch L_mlok")
    a.label("L_non")
    a("s_sleep 8")
    a(f"buffer_load_dwordx4 {vr(vNon, 4)}, off, s[44:47], s87 sc1")
    a("s_waitcnt vmcnt(0)")
    a(f"v_cmp_eq_u32 vcc, 0, v{vNon + 2}")
    a("s_add_u32 s59, s59, 1")
    a(f"s_cmp_lt_u32 s59, {P.spin}")
    a("s_cselect_b64 vcc, vcc, 0")
    a("s_nop 0")
    a("s_cbranch_vccnz L_non")
    a("s_branch L_nonok")
    a.label("L_far1")
    a(f"buffer_store_dwordx4 {vr(G2, 4)}, v{vMlo}, s[36:39], s69 offen sc1")
    a("s_branch L_back1")
    a.label("L_far2")
    a(f"buffer_store_dwordx4 {vr(G0, 4)}, v{vPub}, s[36:39], s68 offen sc1")
    a("s_branch L_back2")
    a.label("L_side")
    a("s_waitcnt vmcnt(0)")
    a("s_barrier")
    a.label("L_fin")
    if P.stamp:
        a("s_mov_b64 exec, -1")
        a("s_waitcnt vmcnt(0)")
        stamp(6)
        a(f"s_getreg_b32 s90, hwreg(HW_REG_XCC_ID)")
        a(f"s_getreg_b32 s91, hwreg(HW_REG_HW_ID)")
        a("s_waitcnt lgkmcnt(0)")
        vals = [f"s{72 + 2 * i}" for i in range(7)] + ["0", "s90", "s91", "s59", "0"]
        for i, s in enumerate(vals):
            a(f"v_mov_b32 v{vAcc + i}, {s}")
        a(f"s_lshl_b32 s56, s2, 2")
        a(f"s_add_u32 s56, s56, s{sW}")
        a(f"s_lshl_b32 s56, s56, 6")
        a(f"s_add_u32 s56, s56, {WS_STAMP}")
        if P.stamp >= 2:
            a(f"s_sub_u32 s57, s56, {WS_STAMP}")
            a(f"s_lshl_b32 s57, s57, 2")
            a(f"s_add_u32 s57, s57, {WS_STAMP * 2}")
            a(f"v_lshlrev_b32 v{vT}, 2, v{vLane}")
            a(f"buffer_store_dword v{vFine}, v{vT}, s[36:39], s57 offen")
            a.comment("FINE " + " ".join(fine))
        a("s_mov_b64 exec, 1")
        for i in range(3):
            a(f"buffer_store_dwordx4 {vr(vAcc + 4 * i, 4)}, off, s[36:39], s56 offset:{16 * i}")
    a.label("L_end")
    a("s_endpgm")
    out = HEADER + f"; @launch grid=(256,1,1) block=(256,1,1) lds={LDS}\n"
    out += '.amdgcn_target "amdgcn-amd-amdhsa--gfx950"\n.text\n' + a.text()
    out += '.section .rodata,"a"\n' + kd(kname, a.nv, 96)
    return out


def main():
    ap = argparse.ArgumentParser()
    ap.add_argument("--NS", type=int, default=2)
    ap.add_argument("--pol", default="nt")
    ap.add_argument("--outpol", default="")
    ap.add_argument("--pubpol", default="")
    ap.add_argument("--map", default="lo")
    ap.add_argument("--qpos", type=int, default=1)
    ap.add_argument("--ttree", type=int, default=4)
    ap.add_argument("--tnon", type=int, default=2)
    ap.add_argument("--tbar", type=int, default=14)
    ap.add_argument("--vwarm", type=int, default=1)
    ap.add_argument("--warm", type=int, default=2)
    ap.add_argument("--twarm", type=int, default=4)
    ap.add_argument("--stamp", type=int, default=0)
    ap.add_argument("--spin", type=int, default=200000)
    ap.add_argument("-o", default="-")
    P = ap.parse_args()
    P.outpol = (" " + P.outpol) if P.outpol else ""
    P.pubpol = (" " + P.pubpol) if P.pubpol else ""
    s = gen(P)
    if P.o == "-":
        sys.stdout.write(s)
    else:
        open(P.o, "w").write(s)


if __name__ == "__main__":
    main()
```
